```python
import torch

def _softmax(x, axis=-1):
    return torch.softmax(x, dim=axis)
def _gelu(x):
    return torch.nn.functional.gelu(x, approximate="tanh")
def _silu(x):
    return torch.nn.functional.silu(x)
def _sigmoid(x):
    return torch.sigmoid(x)
def _layernorm(x, axis=-1, eps=1e-5):
    m = x.mean(dim=axis, keepdim=True)
    v = x.var(dim=axis, keepdim=True, unbiased=False)
    return (x - m) / torch.sqrt(v + eps)
def _scatter_add(tgt, idx, src, axis=0):
    return tgt.clone().index_add_(axis, idx, src)
def _segment_sum(src, seg, n):
    out = torch.zeros((n,) + src.shape[1:], dtype=src.dtype)
    return out.index_add_(0, seg, src)
def _pad(x, pw):
    flat = tuple(v for pair in reversed(pw) for v in pair)
    return torch.nn.functional.pad(x, flat)

kernel_name = 'gated_mix__sliding_local_dilated__dense_activation_relu__prompt'

def setup_inputs():

    _w = (lambda a: (lambda t: t.to(torch.bfloat16) if t.is_floating_point() else t)(torch.as_tensor(a)))
    def _A_setup():
        B, S, D = 1, 2048, 1024
        return {
            "x": _w((lambda *s: torch.randn(*s, dtype=torch.bfloat16) * 0.05)(B, S, D)),
            "wqkv": _w((lambda *s: torch.randn(*s, dtype=torch.bfloat16) * 0.8)(D, 3 * D)),
            "wo": _w((lambda *s: torch.randn(*s, dtype=torch.bfloat16) * 0.05)(D, D)),
        }
    _A_in = _A_setup()

    def _B_setup():
        B, S, D, Dff = 1, 2048, 1024, 3584
        return {
            "x": _w((lambda *s: torch.randn(*s, dtype=torch.bfloat16) * 0.05)(B, S, D)),
            "w1": _w((lambda *s: torch.randn(*s, dtype=torch.bfloat16) * 0.2)(D, Dff)),
            "w2": _w((lambda *s: torch.randn(*s, dtype=torch.bfloat16) * 0.2)(Dff, D)),
        }
    _B_in = _B_setup()

    return {
        "A_x": _A_in["x"],
        "A_wqkv": _A_in["wqkv"],
        "A_wo": _A_in["wo"],
        "B_x": _B_in["x"],
        "B_w1": _B_in["w1"],
        "B_w2": _B_in["w2"],
        "gate_w": _w((lambda *s: torch.randn(*s, dtype=torch.bfloat16) * 0.05)(1024) * 16.0),
    }

def reference(A_x, A_wqkv, A_wo, B_x, B_w1, B_w2, gate_w):
    def _A_ref(x, wqkv, wo):
        B, S, D = x.shape
        H = 32; Dh = D // H
        W, dil = 8, 2
        qkv = (lambda x, *d: x.permute(*d))((x @ wqkv).reshape(B, S, 3, H, Dh), 2, 0, 3, 1, 4)
        q, k, v = qkv[0], qkv[1], qkv[2]
        scale = Dh ** -0.5
        pos = torch.arange(S)
        off = torch.arange(W) * dil
        idx = pos[:, None] - off[None, :]
        mask = idx >= 0
        idx_c = torch.where(mask, idx, 0).reshape(-1)
        kg = k[:, :, idx_c, :].reshape(B, H, S, W, Dh)
        vg = v[:, :, idx_c, :].reshape(B, H, S, W, Dh)
        logits = torch.einsum("bhsd,bhswd->bhsw", q, kg) * scale
        logits = torch.where(mask[None, None, :, :], logits, -1e9)
        attn = _softmax(logits, axis=-1)
        o = torch.einsum("bhsw,bhswd->bhsd", attn, vg)
        return (lambda x, *d: x.permute(*d))(o, 0, 2, 1, 3).reshape(B, S, D) @ wo

    def _B_ref(x, w1, w2):
        h = torch.einsum("bsd,df->bsf", x, w1)
        zero = torch.zeros_like(h)
        h = torch.maximum(h, zero)
        return torch.einsum("bsf,fd->bsd", h, w2)

    x = A_x
    g = _sigmoid((x * gate_w).sum(-1, keepdims=True))
    a = _A_ref(x, A_wqkv, A_wo)
    b = _B_ref(x, B_w1, B_w2)
    return g * a + (1 - g) * b
```

```python
import re

REG_RE = re.compile(r'\b([vas])\[(\d+):(\d+)\]|\b([vas])(\d+)\b|\b(vcc|exec|m0|scc)\b')

def regs_of(tok):
    out = []
    for m in REG_RE.finditer(tok):
        if m.group(1):
            out += [(m.group(1), i) for i in range(int(m.group(2)), int(m.group(3)) + 1)]
        elif m.group(4):
            out.append((m.group(4), int(m.group(5))))
        else:
            n = m.group(6)
            if n == 'vcc': out += [('s', 106), ('s', 107)]
            elif n == 'exec': out += [('s', 126), ('s', 127)]
            elif n == 'm0': out.append(('s', 124))
    return out

TRANS = ('v_exp_f32', 'v_log_f32', 'v_rcp_f32', 'v_rsq_f32', 'v_sqrt_f32', 'v_sin_f32', 'v_cos_f32')

class Ins:
    __slots__ = ('text', 'op', 'kind', 'dst', 'src', 'srcC', 'stdata', 'nops', 'passes', 'dpp', 'lds')
    def __init__(self, text):
        self.text = text
        t = text.split(';')[0].strip()
        self.kind = None; self.dst = []; self.src = []; self.srcC = []; self.stdata = []
        self.nops = 1; self.passes = 0; self.dpp = False; self.lds = False
        if not t or t.endswith(':') or t.startswith('.'):
            self.kind = 'none'; self.op = ''; self.nops = 0
            return
        parts = t.split(None, 1)
        op = parts[0]; self.op = op
        rest = parts[1] if len(parts) > 1 else ''
        ops = [x.strip() for x in rest.split(',')]
        if op == 's_nop':
            self.kind = 'nop'; self.nops = int(rest, 0) + 1
        elif op.startswith('v_mfma'):
            self.kind = 'mfma'
            self.passes = 4 if '16x16x32' in op else 8
            self.dst = regs_of(ops[0]); self.src = regs_of(ops[1]) + regs_of(ops[2]); self.srcC = regs_of(ops[3])
        elif op.startswith('v_'):
            self.kind = 'trans' if any(op.startswith(x) for x in TRANS) else 'valu'
            self.dpp = ('row_' in rest or 'quad_perm' in rest or 'wave_' in rest)
            if op.startswith('v_permlane'):
                self.kind = 'perm'
                self.dst = regs_of(ops[0]) + regs_of(ops[1]); self.src = list(self.dst)
            elif op.startswith('v_cmp'):
                self.dst = regs_of(ops[0]); self.src = sum((regs_of(x) for x in ops[1:]), [])
            elif op.startswith(('v_add_co', 'v_sub_co', 'v_addc_co')):
                self.dst = regs_of(ops[0]) + regs_of(ops[1]); self.src = sum((regs_of(x) for x in ops[2:]), [])
            else:
                self.dst = regs_of(ops[0]); self.src = sum((regs_of(x) for x in ops[1:]), [])
                if op.startswith(('v_fmac', 'v_dot2c', 'v_writelane')) or self.dpp:
                    self.src += self.dst
                if op.startswith('v_cndmask') and len(ops) == 3:
                    self.src += [('s', 106), ('s', 107)]
        elif op.startswith('ds_'):
            self.kind = 'ds'
            if op.startswith('ds_read') or op.startswith('ds_bpermute') or op.startswith('ds_swizzle'):
                self.dst = regs_of(ops[0]); self.src = sum((regs_of(x) for x in ops[1:]), [])
            else:
                self.src = sum((regs_of(x) for x in ops), [])
        elif op.startswith('buffer_') or op.startswith('global_'):
            self.kind = 'vmem'
            self.lds = bool(re.search(r'\blds\b', rest))
            allr = [regs_of(x) for x in ops]
            if 'load' in op and not self.lds:
                self.dst = allr[0]; self.src = sum(allr[1:], [])
            else:
                self.src = sum(allr, [])
                if 'store' in op and ('x4' in op or 'x3' in op):
                    self.stdata = allr[0]
            if self.lds: self.src.append(('s', 124))
        elif op.startswith('s_'):
            self.kind = 'salu'
            if op in ('s_waitcnt', 's_barrier', 's_endpgm', 's_branch', 's_setprio', 's_sleep') or op.startswith('s_cbranch'):
                pass
            elif op.startswith('s_cmp'):
                self.src = sum((regs_of(x) for x in ops), [])
            else:
                self.dst = regs_of(ops[0]); self.src = sum((regs_of(x) for x in ops[1:]), [])
        else:
            raise ValueError('unknown instr ' + text)

def need(lines, insert=True):
    out = []
    pos = 0
    lastw = {}
    lastst = {}
    lastC = {}
    nins = 0
    for text in lines:
        I = Ins(text)
        if I.kind == 'none':
            out.append(text); continue
        req = 0
        def atleast(p, d):
            nonlocal req
            req = max(req, p + d + 1)
        isvalu = I.kind in ('valu', 'trans', 'perm')
        if I.kind == 'mfma':
            for r in I.src:
                w = lastw.get(r)
                if w:
                    if w[1] in ('valu', 'trans', 'perm'): atleast(w[0], 2)
                    elif w[1] == 'mfma': atleast(w[0], {4: 8, 8: 12}[w[2]])
            for r in I.srcC:
                w = lastw.get(r)
                if w:
                    if w[1] in ('valu', 'trans', 'perm'): atleast(w[0], 2)
                    elif w[1] == 'mfma' and not (w[3] == tuple(I.srcC) and w[2] == I.passes):
                        atleast(w[0], {4: 6, 8: 10}[w[2]])
            for r in I.dst:
                w = lastw.get(r)
                if w and w[1] == 'mfma' and not (w[3] == tuple(I.srcC)):
                    atleast(w[0], {4: 8, 8: 12}[w[2]])
        else:
            for r in I.src + I.dst:
                w = lastw.get(r)
                if w and w[1] == 'mfma' and (isvalu or I.kind in ('ds', 'vmem')):
                    atleast(w[0], {4: 8, 8: 12}[w[2]])
            if isvalu:
                for r in I.src:
                    w = lastw.get(r)
                    if not w: continue
                    if w[1] == 'trans' and I.kind != 'trans': atleast(w[0], 1)
                    if w[4].startswith('v_dot2') and I.op != w[4]: atleast(w[0], 3)
                    if w[1] in ('valu', 'trans', 'perm'):
                        if r[0] == 's':
                            atleast(w[0], 4 if I.op.startswith(('v_readlane', 'v_writelane')) else 2)
                        elif I.kind == 'perm' or I.dpp: atleast(w[0], 2)
                        elif I.op.startswith(('v_readfirstlane', 'v_readlane')): atleast(w[0], 1)
                for r in I.dst:
                    if r in lastst: atleast(lastst[r], 2)
                    if r in lastC: atleast(lastC[r][0], {4: 3, 8: 7}[lastC[r][1]])
            if I.kind in ('vmem', 'ds'):
                for r in I.src:
                    w = lastw.get(r)
                    if w and r[0] == 's':
                        if w[1] in ('valu', 'trans', 'perm'): atleast(w[0], 5)
                        if r == ('s', 124) and w[1] == 'salu' and I.lds: atleast(w[0], 1)
                for r in I.dst:
                    if r in lastst: atleast(lastst[r], 1)
            if I.kind == 'salu':
                for r in I.src:
                    w = lastw.get(r)
                    if w and w[1] in ('valu', 'trans', 'perm'): atleast(w[0], 1)
        if req > pos:
            if not insert:
                raise RuntimeError('hazard at: ' + text)
            n = req - pos
            while n > 0:
                k = min(n, 16)
                out.append(f's_nop {k-1}')
                n -= k; pos += k; nins += 1
        out.append(text)
        for r in I.dst:
            lastw[r] = (pos, I.kind, I.passes, tuple(I.dst), I.op)
        for r in I.stdata: lastst[r] = pos
        for r in I.srcC: lastC[r] = (pos, I.passes)
        pos += I.nops
    return out

def interleave(main, fillers):
    by = {}
    for g, ins in fillers:
        by.setdefault(min(g, len(main) - 1), []).append(ins)
    out = []
    out += by.get(-1, [])
    for i, m in enumerate(main):
        out.append(m)
        out += by.get(i, [])
    return out

def rr_merge(lists):
    out = []
    idx = [0] * len(lists)
    while True:
        any_ = False
        for i, l in enumerate(lists):
            if idx[i] < len(l):
                out.append(l[idx[i]]); idx[i] += 1; any_ = True
        if not any_: break
    return out
```

```python
import sys
from asmlib import need, interleave, rr_merge

WS_G = 0x1200000
WS_FLAG = 0x1210000
WS_PART = 0x1300000
WS_DBG = 0x2000000
HROW = 144 * 1024
SCALE = 0x3E3504F3
LOG2E = 0x3FB8AA3B

HEADER = open('gated_mix__sliding_local_dilated__dense_activation_relu__prompt.s.ref').read().split('; Override launch')[0]

class Cfg:
    stamps = False
    NQ = 15
    rot1 = 'none'
    p2map = 'mixed'
    mimic = True
    npf = 4

def srd(e, d, lo, hi, size):
    e(f's_mov_b32 s{d}, s{lo}')
    e(f's_and_b32 s{d+1}, s{hi}, 0xffff')
    e(f's_mov_b32 s{d+2}, 0x{size:x}')
    e(f's_mov_b32 s{d+3}, 0x20000')

def stamp(e, cfg, idx):
    if cfg.stamps:
        e(f's_memrealtime s[{92+2*idx}:{93+2*idx}]')

def stamp_store(e, cfg, slot, srd_ws, vt):
    if not cfg.stamps: return
    e('s_waitcnt lgkmcnt(0)')
    e('s_lshl_b32 s51, s2, 2')
    e('s_add_u32 s51, s51, s20')
    e('s_lshl_b32 s51, s51, 5')
    e(f's_add_u32 s51, s51, 0x{WS_DBG + slot*32768:x}')
    e('s_mov_b64 exec, 1')
    for i in range(8): e(f'v_mov_b32 v{vt+i}, s{92+i}')
    e(f'v_mov_b32 v{vt+8}, 0')
    e(f'buffer_store_dwordx4 v[{vt}:{vt+3}], v{vt+8}, s[{srd_ws}:{srd_ws+3}], s51 offen')
    e(f'buffer_store_dwordx4 v[{vt+4}:{vt+7}], v{vt+8}, s[{srd_ws}:{srd_ws+3}], s51 offen offset:16')

vL = 254
vA0, vA1, vDA0, vDA1 = 231, 232, 233, 234
vDB = [235, 236, 237, 238]
vB = [224, 225, 226, 227, 228, 229, 230]
vAh0, vAh1, vDH = 226, 227, 228

class P1:
    def __init__(self, typ, cfg):
        self.typ = typ; self.cfg = cfg
        self.isq = typ == 'Q'
        self.NA = 9 if self.isq else 8
        self.NB = 6 if self.isq else 7
        self.SA = 34816 if self.isq else 32768
        self.SB = 12288 if self.isq else 16384
        self.ABASE = 4 * self.SB
        self.wstride = 6144 if self.isq else 7168
        self.npB = 3 if self.isq else 4
    def fa(self, s, t): b = s * 72 + 4 * t; return f'a[{b}:{b+3}]'
    def fb(self, s, c): b = s * 72 + 36 + 4 * c; return b
    def mfmas(self, s):
        out = []
        def mm(acc, t, c, swapped=True):
            A = self.fa(s, t); b = self.fb(s, c); B = f'a[{b}:{b+3}]'
            x, y = (B, A) if swapped else (A, B)
            out.append(f'v_mfma_f32_16x16x32_bf16 v[{acc}:{acc+3}], {x}, {y}, v[{acc}:{acc+3}]')
        if not self.isq:
            for t in range(8):
                for c in range(7): mm((t * 7 + c) * 4, t, c)
        else:
            for t in range(9):
                if t < 8:
                    for f in range(2): mm(8 * t + 4 * f, t, f)
                for f in range(2): mm(64 + 8 * t + 4 * f, t, 2 + f)
                for f in range(2): mm(136 + 8 * t + 4 * f, t, 4 + f, swapped=False)
        return out
    def reads(self, s, ks):
        ra = [f'ds_read_b128 {self.fa(s,t)}, v{(vA0,vA1)[ks]} offset:{t*2048}' for t in range(8)]
        if self.isq:
            ra.append(f'ds_read_b128 {self.fa(s,8)}, v{(vAh0,vAh1)[ks]}')
        rb = []
        for c in range(self.NB):
            b = self.fb(s, c)
            for sec in range(2):
                if self.isq:
                    va = vB[c & 1]; off = (c >> 1) * 128 + sec * 1536
                else:
                    va = vB[c]; off = sec * 2048
                rb.append(f'ds_read_b64_tr_b16 a[{b+2*sec}:{b+2*sec+1}], v{va} offset:{off}')
        out = []
        ia = ib = 0
        while ia < len(ra) or ib < len(rb):
            if ib < len(rb): out.append(rb[ib]); ib += 1
            if ia < len(ra): out.append(ra[ia]); ia += 1
            if ib < len(rb) and ib < 2 * ia: out.append(rb[ib]); ib += 1
        return out
    def rd_adv(self, ks, newdA):
        out = [f'v_add_u32 v{(vA0,vA1)[ks]}, s45, v{(vA0,vA1)[ks]}']
        if self.isq: out.append(f'v_add_u32 v{(vAh0,vAh1)[ks]}, s45, v{(vAh0,vAh1)[ks]}')
        for c in range(2 if self.isq else 7):
            out.append(f'v_add_u32 v{vB[c]}, s47, v{vB[c]}')
        out += ['s_add_u32 s48, s48, s47', f's_cmp_eq_u32 s48, {3*self.SB}', 's_cselect_b32 s47, s56, s55']
        if newdA:
            out += ['s_add_u32 s46, s46, s45', f's_cmp_eq_u32 s46, {2*self.SA}', 's_cselect_b32 s45, s54, s53']
        return out
    def dmaA(self, h):
        g = [f's_add_u32 s51, s{36+h}, s35', f's_add_u32 m0, s38, s{39+h}']
        ld = [f'buffer_load_dwordx4 v{(vDA0,vDA1)[p&1]}, s[4:7], s51 offen offset:{p*1024} lds' for p in range(4)]
        post = []
        extra = []
        if h == 1:
            if self.isq:
                extra = [['s_add_u32 s52, s49, s35', 's_add_u32 m0, s38, s50'], [f'buffer_load_dwordx4 v{vDH}, s[4:7], s52 offen lds']]
            post = ['s_add_u32 s35, s35, 128', 's_and_b32 s35, s35, 2047',
                    f's_add_u32 s38, s38, {self.SA}', f's_cmp_ge_u32 s38, {self.ABASE+3*self.SA}',
                    f's_cselect_b32 s58, {3*self.SA}, 0', 's_sub_u32 s38, s38, s58']
        groups = [g] + [[x] for x in ld] + extra
        if post: groups.append(post)
        return groups
    def dmaB(self):
        g = ['s_mov_b32 m0, s43']
        ld = [f'buffer_load_dwordx4 v{vDB[p]}, s[8:11], s41 offen offset:{p*1024} lds' for p in range(self.npB)]
        post = [f's_add_u32 s41, s41, {32*self.wstride}', 's_cmp_ge_u32 s41, s42',
                f's_cselect_b32 s58, {1024*self.wstride}, 0', 's_sub_u32 s41, s41, s58',
                f's_add_u32 s43, s43, {self.SB}', f's_cmp_ge_u32 s43, {4*self.SB}',
                f's_cselect_b32 s58, {4*self.SB}, 0', 's_sub_u32 s43, s43, s58']
        return [g] + [[x] for x in ld] + [post]
    def nops(self, i):
        h = (i + 5) & 1
        return 4 + self.npB + (1 if (self.isq and h == 1) else 0)
    def iteration(self, par, vm, dma=True, reads=True, extra=None):
        out = []
        if reads:
            out.append(f's_waitcnt vmcnt({vm}) lgkmcnt(0)')
            out.append('s_barrier')
        else:
            out.append('s_waitcnt lgkmcnt(0)')
        mm = self.mfmas(par)
        n = len(mm)
        fill = []
        last_read_gap = 0
        cur = 1
        if dma:
            stream = [x for g in self.dmaA((par + 5) & 1) + self.dmaB() for x in g]
            nl = sum(1 for x in stream if x.startswith('buffer'))
            step = (n - 16) // nl
            li = 0
            for x in stream:
                if x.startswith('buffer'):
                    cur = max(cur, 3 + li * step); li += 1
                fill.append((cur, x)); cur += 1
        if reads:
            rd = self.reads(1 - par, 1 - par)
            span = n - 16
            for k, r in enumerate(rd):
                g = k * span // len(rd)
                fill.append((g, r)); last_read_gap = g
            adv = self.rd_adv(1 - par, newdA=(par == 0))
            g = last_read_gap + 1
            for a in adv:
                if a.startswith('s_'): g = max(g, cur)
                fill.append((g, a)); g += 1
        if extra:
            fill += extra
        fill.sort(key=lambda x: x[0])
        return out + interleave(mm, fill)

def gen_p1_path(P, cfg):
    o = []; e = o.append
    isq = P.isq
    T = P.typ
    SA, SB, ABASE = P.SA, P.SB, P.ABASE
    e(f'L1_{T}:')
    if not isq:
        e(f'v_lshrrev_b32 v0, 5, v{vL}')
        e(f'v_and_b32 v1, 31, v{vL}')
        e('s_and_b32 s51, s20, 1')
        e('s_lshl_b32 s51, s51, 3')
        e('v_lshlrev_b32 v2, 1, v0')
        e('v_or_b32 v2, s51, v2')
        e('v_xor_b32 v1, v1, v2')
        e('v_mul_u32_u24 v3, 7168, v0')
        e('v_mov_b32 v6, 0x7fff0000')
        for p in range(4):
            if p & 1:
                e('v_xor_b32 v4, 4, v1')
            else:
                e('v_mov_b32 v4, v1')
            e('v_cmp_gt_u32 vcc, 28, v4')
            e('v_lshlrev_b32 v4, 4, v4')
            e(f'v_add_u32 v4, {p*(2*7168-1024)}, v4')
            e('v_add_u32 v4, v4, v3')
            e(f'v_cndmask_b32 v{vDB[p]}, v6, v4, vcc')
    else:
        e('s_and_b32 s51, s20, 1')
        e('s_lshl_b32 s51, s51, 1')
        for p in range(3):
            e(f'v_add_u32 v0, {64*p}, v{vL}')
            e('v_mul_u32_u24 v1, 2731, v0')
            e('v_lshrrev_b32 v1, 16, v1')
            e('v_mul_u32_u24 v2, 24, v1')
            e('v_sub_u32 v2, v0, v2')
            e('v_lshrrev_b32 v3, 3, v2')
            e('v_and_b32 v2, 7, v2')
            e('v_lshlrev_b32 v4, 1, v1')
            e('v_and_b32 v4, 4, v4')
            e('v_or_b32 v4, s51, v4')
            e('v_xor_b32 v2, v2, v4')
            e('v_lshlrev_b32 v2, 4, v2')
            e('v_lshl_add_u32 v2, v3, 11, v2')
            e('v_mul_u32_u24 v1, 6144, v1')
            e('v_add_u32 v2, v2, v1')
            e(f'v_subrev_u32 v{vDB[p]}, {1024*p}, v2')
        e('s_and_b32 s52, s20, 1')
        e(f'v_lshrrev_b32 v0, 3, v{vL}')
        e('v_lshlrev_b32 v0, 12, v0')
        e(f'v_lshrrev_b32 v1, 4, v{vL}')
        e('s_lshl_b32 s53, s52, 2')
        e('v_or_b32 v1, s53, v1')
        e(f'v_and_b32 v2, 7, v{vL}')
        e('v_xor_b32 v1, v1, v2')
        e('v_lshl_add_u32 v0, v1, 4, v0')
        e('s_lshl_b32 s53, s52, 11')
        e(f'v_add_u32 v{vDH}, s53, v0')
        e('s_lshl_b32 s50, s52, 10')
        e('s_add_u32 s50, s50, 32768')
        e('s_lshl_b32 s49, s21, 8')
        e('s_max_u32 s49, s49, 16')
        e('s_sub_u32 s49, s49, 16')
        e('s_lshl_b32 s49, s49, 11')
    e(f's_mov_b32 s38, {ABASE}')
    e(f's_mul_i32 s43, s20, {SB//4}')
    e(f's_mul_i32 s41, s20, {8*P.wstride}')
    e(f's_mul_i32 s51, s22, {128 if isq else 448}')
    e('s_add_u32 s41, s41, s51')
    e(f's_add_u32 s42, s41, {1024*P.wstride}')
    e(f's_mul_i32 s51, s57, {32*P.wstride}')
    e('s_add_u32 s41, s41, s51')
    e(f's_mov_b32 s53, {SA}'); e(f's_mov_b32 s54, {-2*SA}')
    e(f's_mov_b32 s55, {SB}'); e(f's_mov_b32 s56, {-3*SB}')
    e('s_mov_b32 s45, s53'); e('s_mov_b32 s46, 0'); e('s_mov_b32 s47, s55'); e('s_mov_b32 s48, 0')
    e('s_waitcnt lgkmcnt(0)')
    srd(e, 4, 24, 25, 2048 * 2048)
    if isq: srd(e, 8, 26, 27, 1024 * 6144)
    else: srd(e, 8, 28, 29, 1024 * 7168)
    def flat(gs): return [x for g in gs for x in g]
    for x in flat(P.dmaA(0)): e(x)
    for v in range(-4, 0):
        for x in flat(P.dmaA((v + 5) & 1)) + flat(P.dmaB()): e(x)
        if v == -4 and cfg.npf:
            e('s_getpc_b64 s[16:17]')
            e(f'L1_pc_{T}:')
            e(f's_add_u32 s16, s16, p1_kernel-L1_pc_{T}')
            e(f's_addc_u32 s17, s17, -1')
            e('s_and_b32 s17, s17, 0xffff')
            e(f's_mov_b32 s18, code_end-p1_kernel')
            e('s_mov_b32 s19, 0x20000')
            e(f'v_lshlrev_b32 v0, 4, v{vL}')
            e(f's_mul_i32 s51, s20, {cfg.npf*1024}')
            for i in range(cfg.npf):
                if i % 4 == 0 and i: e('s_add_u32 s51, s51, 4096')
                e(f'buffer_load_dwordx4 a[252:255], v0, s[16:19], s51 offen offset:{(i%4)*1024}')
    srd(e, 12, 32, 33, 0x10000000)
    srd(e, 16, 30, 31, 2048)
    e(f'v_and_b32 v0, 15, v{vL}')
    e(f'v_lshrrev_b32 v1, 4, v{vL}')
    e('v_lshrrev_b32 v2, 1, v0')
    e('v_xor_b32 v2, v2, v1')
    e('v_lshlrev_b32 v2, 4, v2')
    e('v_lshl_add_u32 v2, v0, 7, v2')
    e('s_lshr_b32 s51, s20, 1')
    e('s_lshl_b32 s52, s51, 14')
    e(f's_add_u32 s52, s52, {ABASE}')
    e(f'v_add_u32 v{vA0}, s52, v2')
    e(f'v_xor_b32 v{vA1}, 64, v{vA0}')
    e(f'v_bfe_u32 v3, v{vL}, 2, 2')
    e(f'v_and_b32 v4, 3, v{vL}')
    e('v_lshlrev_b32 v4, 3, v4')
    e('v_lshl_add_u32 v5, v1, 3, v3')
    e('s_and_b32 s52, s20, 1')
    if not isq:
        e('v_lshl_add_u32 v4, v5, 9, v4')
        e('v_and_b32 v6, 1, v1')
        e('v_lshl_add_u32 v6, v6, 2, v3')
        e('s_lshl_b32 s58, s52, 3')
        for t in range(7):
            if t < 6:
                e(f's_add_u32 s59, s58, {t}')
            else:
                e('s_add_u32 s59, s52, 6')
            e('v_xor_b32 v7, s59, v6')
            e(f'v_lshl_add_u32 v{vB[t]}, v7, 5, v4')
    else:
        e('v_mul_u32_u24 v5, 384, v5')
        e('v_add_u32 v4, v4, v5')
        e('v_and_b32 v6, 1, v1')
        e('v_and_b32 v7, 2, v3')
        e('v_or_b32 v6, v6, v7')
        e('s_lshl_b32 s58, s52, 1')
        for t in range(2):
            e(f's_add_u32 s59, s58, {t}')
            e('v_xor_b32 v7, s59, v6')
            e(f'v_lshl_add_u32 v{vB[t]}, v7, 5, v4')
        e('v_cmp_gt_u32 vcc, 8, v0')
        e('v_mov_b32 v7, 112')
        e('v_cndmask_b32 v7, v7, 104, vcc' if False else 'v_mov_b32 v8, 104')
        e('v_cndmask_b32 v7, v7, v8, vcc')
        e('s_cmp_eq_u32 s51, 0')
        e('s_cselect_b64 vcc, -1, 0')
        e('v_mov_b32 v8, 256')
        e('v_cndmask_b32 v7, v7, v8, vcc')
        e('v_add_u32 v7, v7, v0')
        e('v_bfe_u32 v8, v7, 1, 3')
        e('v_xor_b32 v8, v8, v1')
        e('v_lshlrev_b32 v8, 4, v8')
        e('v_lshl_add_u32 v8, v7, 7, v8')
        e(f'v_add_u32 v{vAh0}, {ABASE}, v8')
        e(f'v_xor_b32 v{vAh1}, 64, v{vAh0}')
        e('v_lshlrev_b32 v7, 2, v1')
        e('v_sub_u32 v7, v0, v7')
        e('s_or_b32 s58, s21, s51')
        for j in range(4):
            e(f'v_subrev_u32 v8, {j}, v7')
            e(f'v_cmp_gt_u32 s[{60+2*j}:{61+2*j}], 8, v8')
            e(f'v_cmp_gt_i32 s[{68+2*j}:{69+2*j}], -8, v8')
            e(f'v_cmp_gt_i32 s[{76+2*j}:{77+2*j}], 0, v8')
        e('s_nop 1')
        e('s_cmp_eq_u32 s58, 0')
        for j in range(4):
            e(f's_mov_b32 s{77+2*j}, 0')
            e(f's_cselect_b32 s{76+2*j}, 0, s{76+2*j}')
            e(f's_cselect_b64 s[{84+2*j}:{85+2*j}], 0, s[{68+2*j}:{69+2*j}]')
    nacc = 208 if isq else 224
    for i in range(nacc): e(f'v_mov_b32 v{i}, 0')
    pre = cfg.npf + P.nops(-3) + P.nops(-2) + P.nops(-1)
    e(f's_waitcnt vmcnt({pre})')
    e('s_barrier')
    stamp(e, cfg, 1)
    for x in P.reads(0, 0): e(x)
    for x in P.rd_adv(0, newdA=False): e(x)
    e('s_mov_b32 s34, 14')
    vm = P.nops(0) + P.nops(1)
    e('.p2align 6')
    e(f'L1_loop_{T}:')
    body = P.iteration(0, vm) + P.iteration(1, vm)
    body += ['s_sub_u32 s34, s34, 1', 's_cmp_lg_u32 s34, 0', f's_cbranch_scc1 L1_loop_{T}']
    need(body + body, insert=False) if False else None
    o += body
    gl = []
    gl.append((2, f'v_lshlrev_b32 v{vDA0}, 4, v{vL}'))
    gl.append((2, 's_lshl_b32 s51, s2, 2'))
    gl.append((3, 's_add_u32 s51, s51, s20'))
    gl.append((3, 's_lshl_b32 s51, s51, 12'))
    for k in range(4):
        gl.append((6 + 4 * k, f'buffer_load_dwordx4 a[{144+4*k}:{147+4*k}], v{vDA0}, s[4:7], s51 offen offset:{k*1024}'))
    for k in range(2):
        gl.append((24 + 4 * k, f'buffer_load_dwordx4 a[{160+4*k}:{163+4*k}], v{vDA0}, s[16:19], 0 offen offset:{k*1024}'))
    o += P.iteration(0, P.nops(26) + P.nops(27), dma=False, extra=gl)
    o += P.iteration(1, P.nops(27) + 6, dma=False)
    o += P.iteration(0, 6, dma=False)
    e('s_waitcnt vmcnt(0)')
    o += P.iteration(1, 0, dma=False, reads=False)
    stamp(e, cfg, 2)
    e('s_lshr_b32 s51, s20, 1')
    e('s_and_b32 s52, s20, 1')
    e('s_lshl_b32 s53, s21, 4')
    e('s_lshl_b32 s54, s51, 3')
    e('s_add_u32 s53, s53, s54')
    e(f's_mul_i32 s53, s53, {HROW}')
    e(f'v_lshlrev_b32 v253, 4, v{vL}')
    if not isq:
        e('s_mul_i32 s54, s22, 7168')
        e('s_add_u32 s53, s53, s54')
        e('s_add_u32 s53, s53, 32768')
        e('s_lshl_b32 s54, s52, 3')
        e('s_add_u32 s54, s54, 3072')
        e('v_add_u32 v252, s54, v253')
        e('s_lshl_b32 s54, s52, 12')
        e('v_add_u32 v253, s54, v253')
        for t in range(8):
            for pr in range(3):
                b = (7 * t + 2 * pr) * 4
                for k in range(4): e(f'v_cvt_pk_bf16_f32 v{b+k}, v{b+2*k}, v{b+2*k+1}')
                for k in range(4): e(f'v_pk_max_i16 v{b+k}, v{b+k}, 0')
                e(f'buffer_store_dwordx4 v[{b}:{b+3}], v253, s[12:15], s53 offen offset:{pr*1024}')
            b = (7 * t + 6) * 4
            for k in range(2): e(f'v_cvt_pk_bf16_f32 v{b+k}, v{b+2*k}, v{b+2*k+1}')
            for k in range(2): e(f'v_pk_max_i16 v{b+k}, v{b+k}, 0')
            e(f'buffer_store_dwordx2 v[{b}:{b+1}], v252, s[12:15], s53 offen')
            if t < 7: e(f's_add_u32 s53, s53, {HROW}')
    else:
        e('s_lshl_b32 s54, s22, 11')
        e('s_add_u32 s53, s53, s54')
        e('s_lshl_b32 s54, s52, 10')
        e('s_add_u32 s53, s53, s54')
        for t in range(1, 8): e(f's_add_u32 s{34+t}, s53, {HROW*t}')
        e('s_mov_b32 s34, s53')
        e(f's_mov_b32 s42, 0x{SCALE:x}'); e(f's_mov_b32 s43, 0x{SCALE:x}')
        e(f's_mov_b32 s44, 0x{LOG2E:x}')
        e('s_mov_b32 s45, 0xffff0000')
        e('v_mov_b32 v252, 0xff800000')
        for t in range(8):
            for k in range(4): e(f'v_cvt_pk_bf16_f32 v{8*t+k}, v{8*t+2*k}, v{8*t+2*k+1}')
        for t in range(9):
            b = 64 + 8 * t
            for k in range(4): e(f'v_cvt_pk_bf16_f32 v{b+k}, v{b+2*k}, v{b+2*k+1}')
        def chain(dt, par): return 208 + (dt * 2 + par) * 10
        for dt in range(2):
            for par in range(2):
                c = chain(dt, par)
                srcs = [8] + [par + 2 * i for i in range(4)]
                for i, t in enumerate(srcs):
                    b = 136 + 8 * t + 4 * dt
                    e(f'v_cvt_pk_bf16_f32 v{c+2*i}, v{b}, v{b+1}')
                    e(f'v_cvt_pk_bf16_f32 v{c+2*i+1}, v{b+2}, v{b+3}')
        tasks = []
        for t in range(8):
            L = []; a = L.append
            S = 136 + 8 * t; U = 8 * t + 4; M = 64 + 8 * t + 4
            kp = 64 + 8 * (t - 2 if t >= 2 else 8); kc = 64 + 8 * t; q = 8 * t
            a(f'v_mfma_f32_16x16x32_bf16 v[{S}:{S+3}], v[{kp}:{kp+3}], v[{q}:{q+3}], 0')
            a(f'v_mfma_f32_16x16x32_bf16 v[{S+4}:{S+7}], v[{kc}:{kc+3}], v[{q}:{q+3}], 0')
            def rnd():
                for k in range(4): a(f'v_cvt_pk_bf16_f32 v{U+k}, v{S+2*k}, v{S+2*k+1}')
                for k in range(4):
                    a(f'v_lshlrev_b32 v{S+2*k}, 16, v{U+k}')
                    a(f'v_and_b32 v{S+2*k+1}, s45, v{U+k}')
            if cfg.mimic: rnd()
            for k in range(4): a(f'v_pk_mul_f32 v[{S+2*k}:{S+2*k+1}], v[{S+2*k}:{S+2*k+1}], s[42:43]')
            if cfg.mimic: rnd()
            mp = 76 if t == 0 else (84 if t == 1 else 68)
            for j in range(4):
                a(f'v_cndmask_b32 v{S+j}, v252, v{S+j}, s[{mp+2*j}:{mp+2*j+1}]')
                a(f'v_cndmask_b32 v{S+4+j}, v252, v{S+4+j}, s[{60+2*j}:{61+2*j}]')
            a(f'v_max3_f32 v{M}, v{S}, v{S+1}, v{S+2}')
            a(f'v_max3_f32 v{M+1}, v{S+3}, v{S+4}, v{S+5}')
            a(f'v_max3_f32 v{M}, v{M}, v{S+6}, v{S+7}')
            a(f'v_max_f32 v{M}, v{M}, v{M+1}')
            def xred(op):
                for sw in ('v_permlane32_swap_b32', 'v_permlane16_swap_b32'):
                    a(f'v_mov_b32 v{M+1}, v{M}')
                    a(f'{sw} v{M}, v{M+1}')
                    a(f'{op} v{M}, v{M}, v{M+1}')
            xred('v_max_f32')
            a(f'v_mul_f32 v{M}, s44, v{M}')
            for k in range(8): a(f'v_fma_f32 v{S+k}, v{S+k}, s44, -v{M}')
            for k in range(8): a(f'v_exp_f32 v{S+k}, v{S+k}')
            a(f'v_pk_add_f32 v[{U}:{U+1}], v[{S}:{S+1}], v[{S+2}:{S+3}]')
            a(f'v_pk_add_f32 v[{U+2}:{U+3}], v[{S+4}:{S+5}], v[{S+6}:{S+7}]')
            a(f'v_pk_add_f32 v[{U}:{U+1}], v[{U}:{U+1}], v[{U+2}:{U+3}]')
            a(f'v_add_f32 v{M}, v{U}, v{U+1}')
            xred('v_add_f32')
            a(f'v_rcp_f32 v{M}, v{M}')
            a(f'v_mov_b32 v{M+1}, v{M}')
            for k in range(4): a(f'v_pk_mul_f32 v[{S+2*k}:{S+2*k+1}], v[{S+2*k}:{S+2*k+1}], v[{M}:{M+1}]')
            for k in range(4): a(f'v_cvt_pk_bf16_f32 v{S+k}, v{S+2*k}, v{S+2*k+1}')
            for dt, O in ((0, U), (1, M)):
                c = chain(dt, t & 1) + 2 * (t >> 1)
                a(f'v_mfma_f32_16x16x32_bf16 v[{O}:{O+3}], v[{c}:{c+3}], v[{S}:{S+3}], 0')
            a(f'v_cvt_pk_bf16_f32 v{q}, v{U}, v{U+1}')
            a(f'v_cvt_pk_bf16_f32 v{q+1}, v{U+2}, v{U+3}')
            a(f'v_cvt_pk_bf16_f32 v{q+2}, v{M}, v{M+1}')
            a(f'v_cvt_pk_bf16_f32 v{q+3}, v{M+2}, v{M+3}')
            a(f'buffer_store_dwordx4 v[{q}:{q+3}], v253, s[12:15], s{34+t} offen')
            tasks.append(L)
        o += rr_merge(tasks)
    e(f's_branch L1_gate')
    return o

def gen_p1(cfg):
    o = []; e = o.append
    e('.globl p1_kernel\n.p2align 8\n.type p1_kernel,@function\np1_kernel:')
    e('s_cmp_ge_u32 s2, 256')
    e('s_cbranch_scc1 L1_exit')
    stamp(e, cfg, 0)
    e('s_load_dwordx4 s[24:27], s[0:1], 0')
    e('s_load_dwordx2 s[28:29], s[0:1], 32')
    e('s_load_dwordx2 s[30:31], s[0:1], 48')
    e('s_load_dwordx2 s[32:33], s[0:1], 72')
    e('v_lshrrev_b32 v255, 6, v0')
    e(f'v_and_b32 v{vL}, 63, v0')
    e('v_readfirstlane_b32 s20, v255')
    e('s_and_b32 s51, s2, 7'); e('s_lshr_b32 s52, s2, 3')
    e('s_and_b32 s21, s51, 1'); e('s_lshl_b32 s21, s21, 2'); e('s_and_b32 s53, s52, 3'); e('s_add_u32 s21, s21, s53')
    e('s_lshr_b32 s53, s52, 2')
    e('s_lshr_b32 s22, s51, 1'); e('s_lshl_b32 s22, s22, 2'); e('s_lshr_b32 s54, s53, 1'); e('s_add_u32 s22, s22, s54')
    e('s_and_b32 s23, s53, 1')
    if cfg.rot1 == 'none': e('s_mov_b32 s57, 0')
    elif cfg.rot1 == 'xcd': e('s_lshl_b32 s57, s51, 2')
    elif cfg.rot1 == 'all':
        e('s_and_b32 s57, s52, 3'); e('s_lshl_b32 s57, s57, 1'); e('s_add_u32 s57, s57, s53')
        e('s_lshl_b32 s58, s51, 1'); e('s_add_u32 s57, s57, s58'); e('s_lshl_b32 s57, s57, 1'); e('s_and_b32 s57, s57, 31')
    e(f'v_lshrrev_b32 v0, 3, v{vL}')
    e('v_lshlrev_b32 v0, 12, v0')
    e(f'v_lshrrev_b32 v1, 4, v{vL}')
    e(f'v_and_b32 v2, 7, v{vL}')
    e('v_xor_b32 v1, v1, v2')
    e(f'v_lshl_add_u32 v{vDA0}, v1, 4, v0')
    e('v_xor_b32 v1, 4, v1')
    e('v_lshl_add_u32 v1, v1, 4, v0')
    e(f'v_add_u32 v{vDA1}, {32768-1024}, v1')
    e('s_lshl_b32 s35, s57, 6')
    e('s_lshl_b32 s36, s21, 19')
    e('s_lshl_b32 s58, s20, 16')
    e('s_add_u32 s36, s36, s58')
    e(f's_add_u32 s37, s36, {4*32*2048}')
    e('s_lshl_b32 s39, s20, 12')
    e('s_add_u32 s40, s39, 16384')
    e('s_cmp_eq_u32 s23, 0')
    e('s_cbranch_scc1 L1_Q')
    o += gen_p1_path(P1('W', cfg), cfg)
    o += gen_p1_path(P1('Q', cfg), cfg)
    e('L1_gate:')
    e('s_waitcnt vmcnt(0)') if False else None
    G = 140
    for k in range(24): e(f'v_accvgpr_read_b32 v{G+k}, a{144+k}')
    e('s_mov_b32 s45, 0xffff0000')
    e('v_mov_b32 v170, 0x3f803f80')
    e('v_mov_b32 v172, 0'); e('v_mov_b32 v173, 0')
    for d in range(8):
        w = G + 16 + d
        e(f'v_lshlrev_b32 v174, 16, v{w}')
        e(f'v_and_b32 v175, s45, v{w}')
        for r in range(2):
            x = G + 8 * r + d
            tq = 176 + 2 * r
            e(f'v_lshlrev_b32 v{tq}, 16, v{x}')
            e(f'v_and_b32 v{tq+1}, s45, v{x}')
            e(f'v_pk_mul_f32 v[{tq}:{tq+1}], v[{tq}:{tq+1}], v[174:175]')
            e(f'v_cvt_pk_bf16_f32 v{tq}, v{tq}, v{tq+1}')
            e(f'v_dot2_f32_bf16 v{172+r}, v{tq}, v170, v{172+r}')
    e('s_nop 3')
    for sh in (8, 4, 2, 1):
        for r in range(2): e(f'v_add_f32_dpp v{172+r}, v{172+r}, v{172+r} row_ror:{sh} row_mask:0xf bank_mask:0xf')
    for sw in ('v_permlane32_swap_b32', 'v_permlane16_swap_b32'):
        for r in range(2): e(f'v_mov_b32 v{174+r}, v{172+r}')
        for r in range(2): e(f'{sw} v{172+r}, v{174+r}')
        for r in range(2): e(f'v_add_f32 v{172+r}, v{172+r}, v{174+r}')
    e(f'v_cmp_eq_u32 vcc, 1, v{vL}')
    e('v_cndmask_b32 v172, v172, v173, vcc')
    e('v_cvt_pk_bf16_f32 v172, v172, v172')
    e('v_and_b32 v172, s45, v172')
    e(f'v_mul_f32 v172, 0x{LOG2E ^ 0x80000000:x}, v172')
    e('v_exp_f32 v172, v172')
    e('v_add_f32 v172, 1.0, v172')
    e('v_rcp_f32 v172, v172')
    e('v_cvt_pk_bf16_f32 v172, v172, v172')
    e('v_and_b32 v172, s45, v172')
    e('v_sub_f32 v173, 1.0, v172')
    e('v_cvt_pk_bf16_f32 v173, v173, v173')
    e('v_and_b32 v173, s45, v173')
    e('s_lshl_b32 s51, s2, 2'); e('s_add_u32 s51, s51, s20'); e('s_lshl_b32 s51, s51, 3')
    e(f's_add_u32 s51, s51, 0x{WS_G:x}')
    e(f'v_lshlrev_b32 v174, 2, v{vL}')
    e('v_mov_b32 v175, 0')
    e('s_lshl_b32 s52, s2, 7')
    e(f's_add_u32 s52, s52, 0x{WS_FLAG:x}')
    e('s_add_u32 s53, s51, 8192')
    e('s_mov_b64 exec, 3')
    e('buffer_store_dword v172, v174, s[12:15], s51 offen')
    e('buffer_store_dword v173, v174, s[12:15], s53 offen')
    e('buffer_store_dword v175, v174, s[12:15], s52 offen')
    if cfg.stamps:
        e('s_waitcnt vmcnt(0)')
        stamp(e, cfg, 3)
        stamp_store(e, cfg, 0, 12, 180)
    e('L1_exit:')
    e('s_endpgm')
    return o

def gen_p2(cfg):
    o = []; e = o.append
    wB = list(range(200, 208))
    wD = [208, 209, 210, 211]
    wL16 = 212
    wG = [213, 214]; wO = [215, 216]
    SLOT = 32768
    e('.globl p2_kernel\n.p2align 8\n.type p2_kernel,@function\np2_kernel:')
    e('s_cmp_ge_u32 s2, 256')
    e('s_cbranch_scc1 L2_exit')
    stamp(e, cfg, 0)
    e('s_load_dwordx2 s[24:25], s[0:1], 16')
    e('s_load_dwordx2 s[26:27], s[0:1], 40')
    e('s_load_dwordx2 s[28:29], s[0:1], 56')
    e('s_load_dwordx2 s[30:31], s[0:1], 72')
    e('v_lshrrev_b32 v255, 6, v0')
    e(f'v_and_b32 v{vL}, 63, v0')
    e('v_readfirstlane_b32 s20, v255')
    e('s_and_b32 s51, s2, 7'); e('s_lshr_b32 s52, s2, 3')
    if cfg.p2map == 'mixed':
        e('s_and_b32 s23, s52, 1')
        e('s_lshr_b32 s21, s51, 1'); e('s_lshl_b32 s21, s21, 2'); e('s_bfe_u32 s53, s52, 0x20001'); e('s_add_u32 s21, s21, s53')
        e('s_and_b32 s22, s51, 1'); e('s_lshl_b32 s22, s22, 2'); e('s_lshr_b32 s53, s52, 3'); e('s_add_u32 s22, s22, s53')
    else:
        e('s_and_b32 s23, s51, 1')
        e('s_lshr_b32 s21, s51, 1'); e('s_lshl_b32 s21, s21, 2'); e('s_and_b32 s53, s52, 3'); e('s_add_u32 s21, s21, s53')
        e('s_lshr_b32 s22, s52, 2')
    e(f'v_lshlrev_b32 v{wL16}, 4, v{vL}')
    e(f'v_lshrrev_b32 v1, 4, v{vL}')
    e(f'v_and_b32 v0, 15, v{vL}')
    e('v_lshlrev_b32 v2, 1, v1')
    e('v_xor_b32 v2, v2, v0')
    e('v_lshlrev_b32 v3, 11, v1')
    for p in range(4):
        if p & 1: e('v_xor_b32 v4, 8, v2')
        else: e('v_mov_b32 v4, v2')
        e('v_lshl_add_u32 v4, v4, 4, v3')
        e(f'v_add_u32 v{wD[p]}, {p*(8192-1024)}, v4')
    e('s_cmp_eq_u32 s23, 0')
    e(f's_cselect_b32 s34, {cfg.NQ}, {36-cfg.NQ}')
    e(f's_cselect_b32 s35, 0, {cfg.NQ*4}')
    e('s_cselect_b32 s36, 8, -1')
    e('s_cselect_b32 s37, 7, -1')
    e(f's_cselect_b32 s38, 0, {(cfg.NQ*4-32)*32*2048}')
    e('s_lshl_b32 s39, s21, 3'); e('s_lshl_b32 s51, s20, 1'); e('s_add_u32 s39, s39, s51')
    e(f's_mul_i32 s40, s39, {HROW}')
    e('s_lshl_b32 s51, s35, 10')
    e('s_add_u32 s40, s40, s51')
    e(f's_add_u32 s41, s40, {HROW}')
    e('s_lshl_b32 s51, s20, 16'); e('s_lshl_b32 s52, s22, 8'); e('s_add_u32 s51, s51, s52')
    e('s_mov_b32 s44, s51')
    e('s_add_u32 s38, s38, s51')
    e('s_lshl_b32 s42, s20, 13')
    e('s_mov_b32 s49, 4096')
    e('s_mov_b32 s43, 0')
    e('s_mov_b32 s45, 0')
    e('s_mov_b32 s46, 0')
    e(f's_mov_b32 s47, {SLOT}'); e('s_mov_b32 s48, 0'); e(f's_mov_b32 s55, {SLOT}'); e(f's_mov_b32 s56, {-2*SLOT}')
    e('s_waitcnt lgkmcnt(0)')
    e('s_cmp_eq_u32 s23, 0')
    e('s_cselect_b32 s8, s24, s26'); e('s_cselect_b32 s9, s25, s27'); e('s_and_b32 s9, s9, 0xffff')
    e('s_cmp_eq_u32 s23, 0')
    e(f's_mov_b32 s10, {3584*2048}'); e(f's_cselect_b32 s10, {1024*2048}, s10'); e('s_mov_b32 s11, 0x20000')
    e('s_and_b32 s27, s27, 0xffff')
    srd(e, 12, 30, 31, 0x10000000)
    srd(e, 16, 28, 29, 2048 * 2048)
    e('s_lshl_b32 s51, s39, 6')
    e(f's_add_u32 s51, s51, 0x{WS_G:x}')
    e('s_add_u32 s52, s51, 8192')
    e('v_lshlrev_b32 v5, 3, v0')
    e(f'buffer_load_dwordx2 v[{wG[0]+1}:{wG[0]+2}], v5, s[12:15], s51 offen' if False else f'buffer_load_dword v{wG[0]}, v5, s[12:15], s51 offen')
    e(f'buffer_load_dword v{wG[1]}, v5, s[12:15], s51 offen offset:4')
    e(f'buffer_load_dword v{wO[0]}, v5, s[12:15], s52 offen')
    e(f'buffer_load_dword v{wO[1]}, v5, s[12:15], s52 offen offset:4')

    def areg(slot, q, tb): b = 64 + ((slot * 4 + q) * 2 + tb) * 4; return f'a[{b}:{b+3}]'
    def aload(slot, q):
        l = [f'buffer_load_dwordx4 {areg(slot,q,tb)}, v{wL16}, s[12:15], s{40+tb} offen offset:{q*1024}' for tb in range(2)]
        post = []
        if q == 3:
            post = ['s_add_u32 s45, s45, 1', 's_cmp_ge_u32 s45, s34', 's_cselect_b32 s58, 0x40000000, s49',
                    's_add_u32 s40, s40, s58', 's_add_u32 s41, s41, s58', 's_min_u32 s40, s40, 0x40000000', 's_min_u32 s41, s41, 0x40000000']
        return l, post
    def bdma(half):
        if half == 0:
            pre = ['s_mov_b32 m0, s42']
            so = 's38'
        else:
            pre = ['s_add_u32 m0, s42, 4096', 's_add_u32 s59, s38, 32768']
            so = 's59'
        l = [f'buffer_load_dwordx4 v{wD[p]}, s[8:11], {so} offen offset:{p*1024} lds' for p in range(4)]
        post = []
        if half == 1:
            post = ['s_add_u32 s43, s43, 1', f's_add_u32 s38, s38, {128*2048}',
                    's_cmp_eq_u32 s43, s36',
                    's_cselect_b32 s8, s26, s8', 's_cselect_b32 s9, s27, s9', f's_cselect_b32 s10, {3584*2048}, s10', 's_cselect_b32 s38, s44, s38',
                    's_cmp_ge_u32 s43, s34', 's_cselect_b32 s38, 0x40000000, s38',
                    f's_add_u32 s42, s42, {SLOT}', f's_cmp_ge_u32 s42, {3*SLOT}', f's_cselect_b32 s58, {3*SLOT}, 0', 's_sub_u32 s42, s42, s58']
        return pre, l, post
    seq = []
    for n in range(-3, 8):
        seq.append(('mark', n, 0))
        seq += [('B', n + 2, 1)] * 4 + [('A', n + 2, 3)] * 2
        seq.append(('mark', n, 1)); seq += [('A', n + 3, 0)] * 2
        seq.append(('mark', n, 2)); seq += [('A', n + 3, 1)] * 2
        seq.append(('mark', n, 3)); seq += [('A', n + 3, 2)] * 2 + [('B', n + 3, 0)] * 4
    def cnt(n, q, needs):
        i = seq.index(('mark', n, q))
        ops = [x for x in seq[:i] if x[0] != 'mark']
        last = max(k for k, x in enumerate(ops) if x in needs)
        return len(ops) - 1 - last
    vmA = [cnt(4, q, [('A', 4, q)]) for q in range(4)]
    vmBar = cnt(4, 3, [('A', 4, 3), ('B', 5, 0), ('B', 5, 1)])
    vmPre = cnt(0, 0, [('B', 0, 0), ('B', 0, 1)])
    for x in seq:
        if x == ('mark', 0, 0): break
    k = 0
    done = set()
    for x in seq[:seq.index(('mark', 0, 0))]:
        if x[0] == 'mark' or x[1] < 0 or x in done: continue
        done.add(x)
        if x[0] == 'A':
            l, post = aload(x[1] % 3, x[2])
            for y in l + post: e(y)
        else:
            pre, l, post = bdma(x[2])
            for y in pre + l + post: e(y)
    e(f'v_bfe_u32 v3, v{vL}, 2, 2')
    e(f'v_and_b32 v4, 3, v{vL}')
    e('v_lshlrev_b32 v4, 3, v4')
    e('v_lshl_add_u32 v5, v1, 2, v3')
    e('v_lshl_add_u32 v4, v5, 8, v4')
    e('v_and_b32 v6, 7, v5')
    for ct in range(8):
        e(f'v_xor_b32 v7, {ct}, v6')
        e(f'v_lshl_add_u32 v{wB[ct]}, v7, 5, v4')
    for i in range(64): e(f'v_mov_b32 v{i}, 0')
    def breads(s, q):
        return [f'ds_read_b64_tr_b16 a[{s*32+ct*4+2*sec}:{s*32+ct*4+2*sec+1}], v{wB[ct]} offset:{q*8192+sec*4096}'
                for ct in range(8) for sec in range(2)]
    def radv():
        return [f'v_add_u32 v{wB[ct]}, s47, v{wB[ct]}' for ct in range(8)] + \
               ['s_add_u32 s48, s48, s47', f's_cmp_eq_u32 s48, {2*SLOT}', 's_cselect_b32 s47, s56, s55']
    e(f's_waitcnt vmcnt({vmPre})')
    e('s_barrier')
    stamp(e, cfg, 1)
    for x in breads(0, 0): e(x)
    e('.p2align 6')
    e('L2_loop:')
    RS = 11
    for u in range(3):
        for q in range(4):
            s = q & 1
            mm = [f'v_mfma_f32_16x16x32_bf16 v[{(tb*8+ct)*4}:{(tb*8+ct)*4+3}], a[{s*32+ct*4}:{s*32+ct*4+3}], {areg(u,q,tb)}, v[{(tb*8+ct)*4}:{(tb*8+ct)*4+3}]'
                  for ct in range(8) for tb in range(2)]
            fill = []
            if q == 3:
                e(f's_waitcnt vmcnt({vmBar}) lgkmcnt(0)')
                e('s_barrier')
            else:
                e(f's_waitcnt vmcnt({vmA[q]}) lgkmcnt(0)')
            rd = breads(1 - s, (q + 1) & 3)
            for k, r in enumerate(rd): fill.append((k * RS // 16, r))
            def place(stream, g0, step, per=1):
                cur = g0; li = 0; k = 0
                for x in stream:
                    if x.startswith('buffer'):
                        cur = max(cur, g0 + li * step); li += 1
                        fill.append((cur, x)); cur += 1; k = 0
                    else:
                        fill.append((cur, x)); k += 1
                        if k >= per: cur += 1; k = 0
            if q == 0:
                pre, l, post = bdma(1)
                l2, post2 = aload((u + 2) % 3, 3)
                place(pre + l + l2, 1, 1)
                place(post + post2, 9, 1, per=3)
            elif q == 1:
                l2, post2 = aload(u, 0)
                place(l2, 4, 6)
            elif q == 2:
                l2, post2 = aload(u, 1)
                place(l2, 4, 4)
                place(radv(), RS, 1, per=2)
            else:
                l2, post2 = aload(u, 2)
                pre, l, post = bdma(0)
                place(l2 + pre + l, 1, 2)
            fill.sort(key=lambda x: x[0])
            o += interleave(mm, fill)
        if u == 1:
            e('s_cmp_eq_u32 s46, s37')
            e('s_cbranch_scc1 L2_mid')
            e('L2_mid_ret:')
        e('s_add_u32 s46, s46, 1')
        e('s_cmp_ge_u32 s46, s34')
        if u < 2: e('s_cbranch_scc1 L2_done')
        else: e('s_cbranch_scc0 L2_loop')
    e('L2_done:')
    stamp(e, cfg, 2)
    e('s_lshl_b32 s51, s21, 3'); e('s_add_u32 s51, s51, s22')
    e('s_lshl_b32 s52, s51, 16'); e('s_lshl_b32 s53, s20, 14'); e('s_add_u32 s52, s52, s53')
    e(f's_add_u32 s52, s52, 0x{WS_PART:x}')
    e('s_lshl_b32 s53, s51, 7'); e(f's_add_u32 s53, s53, 0x{WS_FLAG:x}')
    e('v_mov_b32 v220, 0')
    e('s_cmp_eq_u32 s23, 0')
    e('s_cbranch_scc0 L2_P')
    e('s_nop 7')
    for i in range(16):
        tb = i // 8
        for k in range(4): e(f'v_fma_f32 v{64+4*i+k}, v{4*i+k}, v{wO[tb]}, v{64+4*i+k}')
        if i % 4 == 0 and i: e('s_add_u32 s52, s52, 4096')
        e(f'buffer_store_dwordx4 v[{64+4*i}:{67+4*i}], v{wL16}, s[12:15], s52 offen offset:{(i%4)*1024} sc1')
    e('s_waitcnt vmcnt(0)')
    e('s_barrier')
    e('s_cmp_eq_u32 s20, 0')
    e('s_cbranch_scc0 L2_fin')
    e('v_mov_b32 v221, 1')
    e('s_mov_b64 exec, 1')
    e('buffer_store_dword v221, v220, s[12:15], s53 offen sc1')
    e('s_branch L2_fin')
    e('L2_mid:')
    e('s_nop 7')
    for i in range(64): e(f'v_mul_f32 v{64+i}, v{i}, v{wG[i//32]}')
    for i in range(64): e(f'v_mov_b32 v{i}, 0')
    e('s_nop 1')
    e('s_branch L2_mid_ret')
    e('L2_P:')
    e('s_mov_b32 s55, 0')
    e('L2_poll:')
    e('s_add_u32 s55, s55, 1')
    e('s_cmp_gt_u32 s55, 0x40000')
    e('s_cbranch_scc1 L2_got')
    e('buffer_load_dword v221, v220, s[12:15], s53 offen sc1')
    e('s_waitcnt vmcnt(0)')
    e('v_readfirstlane_b32 s54, v221')
    e('s_cmp_eq_u32 s54, 1')
    e('s_cbranch_scc1 L2_got')
    e('s_sleep 2')
    e('s_branch L2_poll')
    e('L2_got:')
    for i in range(16):
        if i % 4 == 0 and i: e('s_add_u32 s52, s52, 4096')
        e(f'buffer_load_dwordx4 v[{64+4*i}:{67+4*i}], v{wL16}, s[12:15], s52 offen offset:{(i%4)*1024} sc1')
    e(f'v_and_b32 v222, 15, v{vL}')
    e('v_lshlrev_b32 v222, 12, v222')
    e(f'v_lshrrev_b32 v223, 4, v{vL}')
    e('v_lshl_add_u32 v222, v223, 3, v222')
    e('s_lshl_b32 s54, s21, 18'); e('s_lshl_b32 s55, s20, 16'); e('s_add_u32 s54, s54, s55')
    e('s_lshl_b32 s55, s22, 8'); e('s_add_u32 s54, s54, s55')
    for i in range(16):
        tb = i // 8; ct = i % 8
        e(f's_waitcnt vmcnt({15})' if i == 0 else f's_waitcnt vmcnt(15)')
        for k in range(4): e(f'v_fma_f32 v{64+4*i+k}, v{4*i+k}, v{wO[tb]}, v{64+4*i+k}')
        e(f'v_cvt_pk_bf16_f32 v{64+4*i}, v{64+4*i}, v{65+4*i}')
        e(f'v_cvt_pk_bf16_f32 v{65+4*i}, v{66+4*i}, v{67+4*i}')
        e(f'buffer_store_dwordx2 v[{64+4*i}:{65+4*i}], v222, s[16:19], s54 offen offset:{tb*2048+ct*32}')
    e('L2_fin:')
    if cfg.stamps:
        e('s_waitcnt vmcnt(0)')
        stamp(e, cfg, 3)
        stamp_store(e, cfg, 1, 12, 224)
    e('L2_exit:')
    e('s_endpgm')
    return o

def kd(name, vgpr):
    return f'''.amdhsa_kernel {name}
  .amdhsa_next_free_vgpr {vgpr}
  .amdhsa_next_free_sgpr 102
  .amdhsa_accum_offset 256
  .amdhsa_group_segment_fixed_size 0
  .amdhsa_kernarg_size 80
  .amdhsa_user_sgpr_count 2
  .amdhsa_user_sgpr_kernarg_segment_ptr 1
  .amdhsa_system_sgpr_workgroup_id_x 1
.end_amdhsa_kernel'''

def gen(cfg):
    lines = []
    for blk in gen_p1(cfg) + gen_p2(cfg):
        lines += blk.split('\n')
    lines = need(lines)
    txt = HEADER
    txt += '; @launch kernel=p1_kernel grid=(256,1,1) block=(256,1,1) lds=163840\n'
    txt += '; @launch kernel=p2_kernel grid=(256,1,1) block=(256,1,1) lds=98304\n'
    txt += '.amdgcn_target "amdgcn-amd-amdhsa--gfx950"\n.text\n'
    txt += '\n'.join(lines) + '\ncode_end:\n'
    txt += '.section .rodata,"a"\n.p2align 6\n' + kd('p1_kernel', 512) + '\n.p2align 6\n' + kd('p2_kernel', 512) + '\n'
    return txt

if __name__ == '__main__':
    cfg = Cfg()
    for a in sys.argv[2:]:
        k, v = a.split('=')
        cur = getattr(cfg, k)
        setattr(cfg, k, type(cur)(int(v)) if isinstance(cur, (bool, int)) else v)
    open(sys.argv[1], 'w').write(gen(cfg))
```

```python
import sys
from asmlib import need, interleave, rr_merge

KNAME = 'gated_mix__sliding_local_dilated__dense_activation_relu__prompt_kernel'
WS_G = 0x1200000
WS_FLAG = 0x1240000
WS_PART = 0x1300000
WS_DBG = 0x2000000
HROW = 144 * 1024
SCALE = 0x3E3504F3
LOG2E = 0x3FB8AA3B
SPIN = 0x80000

HEADER = open('gated_mix__sliding_local_dilated__dense_activation_relu__prompt.s.ref').read().split('; Override launch')[0]

class Cfg:
    stamps = 0
    NQ = 16
    rot1 = 'none'
    mimic = 1
    tlb = 1
    wpf0 = 5
    erate = 3
    npf = 3
    wpf = 1
    early = 1
    RS = 13
    slp = 2
    vpos = (2, 6, 10, 14)
    asc = 'sc1'
    nomfma2 = 0
    noA2 = 0
    noB2 = 0
    nord2 = 0

def srd(d, lo, hi, size):
    return [f's_mov_b32 s{d}, s{lo}', f's_and_b32 s{d+1}, s{hi}, 0xffff', f's_mov_b32 s{d+2}, 0x{size:x}', f's_mov_b32 s{d+3}, 0x20000']

NST = 8
def stamp(e, cfg, idx):
    if cfg.stamps:
        e(f"{'s_memrealtime' if cfg.stamps == 1 else 's_memtime'} s[100:101]")
        e('s_waitcnt lgkmcnt(0)')
        e(f'v_writelane_b32 v255, s100, {idx}')

vL = 254
vA0, vA1, vDA0, vDA1 = 232, 233, 234, 235
vDB = [236, 237, 238, 239]
vB = [224, 225, 226, 227, 228, 229, 230, 231]
vAh0, vAh1, vDH = 226, 227, 228

def place(fill, stream, g0, step, per=1):
    cur = g0; li = 0; k = 0
    for x in stream:
        if x.startswith('buffer'):
            cur = max(cur, g0 + li * step); li += 1
            fill.append((cur, x)); cur += 1; k = 0
        else:
            fill.append((cur, x)); k += 1
            if k >= per: cur += 1; k = 0
    return cur

class P1:
    def __init__(self, typ, cfg):
        self.typ = typ; self.cfg = cfg
        self.isq = typ == 'Q'
        self.NB = 6 if self.isq else 14
        self.SA = 34816 if self.isq else 32768
        self.SB = 12288 if self.isq else 16384
        self.ABASE = 4 * self.SB
        self.wstride = 6144 if self.isq else 7168
        self.npB = 3 if self.isq else 4
    def fa(self, s, t): b = s * 72 + 4 * t; return f'a[{b}:{b+3}]'
    def fb(self, s, c): b = s * 72 + (36 if self.isq else 16) + 4 * c; return b
    def mfmas(self, s, last=False):
        out = []
        def mm(acc, t, c, swapped=True):
            A = self.fa(s, t); b = self.fb(s, c); B = f'a[{b}:{b+3}]'
            x, y = (B, A) if swapped else (A, B)
            out.append(f'v_mfma_f32_16x16x32_bf16 v[{acc}:{acc+3}], {x}, {y}, v[{acc}:{acc+3}]')
        if not self.isq:
            for t in range(4):
                for c in range(14): mm((t * 14 + c) * 4, t, c)
        else:
            for t in range(9):
                if t < 8:
                    for f in range(2): mm(8 * t + 4 * f, t, f)
                for f in range(2): mm(64 + 8 * t + 4 * f, t, 2 + f)
                if not last:
                    for f in range(2): mm(136 + 8 * t + 4 * f, t, 4 + f, swapped=False)
            if last:
                for t in (8, 0, 1, 2, 3, 4, 5, 6, 7):
                    for f in range(2): mm(136 + 8 * t + 4 * f, t, 4 + f, swapped=False)
        return out
    def reads(self, s, ks):
        ra = [f'ds_read_b128 {self.fa(s,t)}, v{(vA0,vA1)[ks]} offset:{t*2048}' for t in range(8 if self.isq else 4)]
        if self.isq:
            ra.append(f'ds_read_b128 {self.fa(s,8)}, v{(vAh0,vAh1)[ks]}')
        rb = []
        for c in range(self.NB):
            b = self.fb(s, c)
            for sec in range(2):
                if self.isq:
                    va = vB[c & 1]; off = (c >> 1) * 128 + sec * 1536
                else:
                    va = vB[c & 7]; off = sec * 2048 + (c >> 3) * 256
                rb.append(f'ds_read_b64_tr_b16 a[{b+2*sec}:{b+2*sec+1}], v{va} offset:{off}')
        out = []
        ia = 0
        for ib, r in enumerate(rb):
            out.append(r)
            while ia < len(ra) and ia * len(rb) <= ib * len(ra):
                out.append(ra[ia]); ia += 1
        return out + ra[ia:]
    def rd_adv(self, ks, newdA):
        out = [f'v_add_u32 v{(vA0,vA1)[ks]}, s45, v{(vA0,vA1)[ks]}']
        if self.isq: out.append(f'v_add_u32 v{(vAh0,vAh1)[ks]}, s45, v{(vAh0,vAh1)[ks]}')
        for c in range(2 if self.isq else 8):
            out.append(f'v_add_u32 v{vB[c]}, s47, v{vB[c]}')
        out += ['s_add_u32 s48, s48, s47', f's_cmp_eq_u32 s48, {3*self.SB}', 's_cselect_b32 s47, s56, s55']
        if newdA:
            out += ['s_add_u32 s46, s46, s45', f's_cmp_eq_u32 s46, {2*self.SA}', 's_cselect_b32 s45, s54, s53']
        return out
    def dmaA(self, h):
        g = [f's_add_u32 s51, s{36+h}, s35', f's_add_u32 m0, s38, s{39+h}']
        g += [f'buffer_load_dwordx4 v{(vDA0,vDA1)[p&1]}, s[4:7], s51 offen offset:{p*1024} lds' for p in range(4)]
        if h == 1:
            if self.isq:
                g += ['s_add_u32 s52, s49, s35', 's_add_u32 m0, s38, s50', f'buffer_load_dwordx4 v{vDH}, s[4:7], s52 offen lds']
            g += ['s_add_u32 s35, s35, 128', 's_and_b32 s35, s35, 2047',
                  f's_add_u32 s38, s38, {self.SA}', f's_cmp_ge_u32 s38, {self.ABASE+3*self.SA}',
                  f's_cselect_b32 s58, {3*self.SA}, 0', 's_sub_u32 s38, s38, s58']
        return g
    def dmaB(self):
        g = ['s_mov_b32 m0, s43']
        g += [f'buffer_load_dwordx4 v{vDB[p]}, s[8:11], s41 offen offset:{p*1024} lds' for p in range(self.npB)]
        g += [f's_add_u32 s41, s41, {32*self.wstride}', 's_cmp_ge_u32 s41, s42',
              f's_cselect_b32 s58, {1024*self.wstride}, 0', 's_sub_u32 s41, s41, s58',
              f's_add_u32 s43, s43, {self.SB}', f's_cmp_ge_u32 s43, {4*self.SB}',
              f's_cselect_b32 s58, {4*self.SB}, 0', 's_sub_u32 s43, s43, s58']
        return g
    def wpf(self, par):
        if not self.cfg.wpf: return []
        if par == 0: return [f'buffer_load_dwordx4 a[252:255], v253, s[16:19], s57 offen']
        return [f'buffer_load_dwordx4 a[252:255], v253, s[96:99], s57 offen', 's_add_u32 s57, s57, 1024']
    def nops(self, i):
        h = (i + 5) & 1
        return 4 + self.npB + (1 if (self.isq and h == 1) else 0) + (1 if (self.cfg.wpf and i >= 0) else 0)
    def iteration(self, par, vm, dma=True, reads=True, adv=True, stream=None, step=4, per=1, vstream=None, head=None):
        out = [f's_waitcnt vmcnt({vm}) lgkmcnt(0)', 's_barrier']
        mm = self.mfmas(par)
        n = len(mm)
        fill = []
        cur = 1
        if dma:
            stream = (head or []) + self.dmaA((par + 5) & 1) + self.dmaB() + self.wpf(par)
            nl = sum(1 for x in stream if x.startswith('buffer'))
            step = max(1, (n - 14) // nl)
            cur = 1; li = 0
            for x in stream:
                if x.startswith('buffer'):
                    cur = max(cur, 3 + li * step); li += 1
                fill.append((cur, x)); cur += 1
        elif stream:
            cur = place(fill, stream, 1, step, per)
        if reads:
            rd = self.reads(1 - par, 1 - par)
            span = n - 16
            g = 0
            for k, r in enumerate(rd):
                g = k * span // len(rd)
                fill.append((g, r))
            if adv:
                g += 1
                for a in self.rd_adv(1 - par, newdA=(par == 0)):
                    if a.startswith('s_'): g = max(g, cur)
                    fill.append((g, a)); g += 1
        if vstream:
            for k, x in enumerate(vstream):
                fill.append((k * (n - 1) // len(vstream), x))
        fill.sort(key=lambda x: x[0])
        return out + interleave(mm, fill)

def gate_streams():
    a = []
    e = a.append
    e('v_mov_b32 v240, 0x3f803f80')
    e('v_mov_b32 v241, 0'); e('v_mov_b32 v242, 0')
    e('v_mov_b32 v253, 0xffff0000')
    for d in range(8):
        e(f'v_accvgpr_read_b32 v243, a{160+d}')
        e(f'v_accvgpr_read_b32 v244, a{144+d}')
        e(f'v_accvgpr_read_b32 v251, a{152+d}')
        e('v_lshlrev_b32 v245, 16, v243')
        e('v_and_b32 v246, v253, v243')
        e('v_lshlrev_b32 v247, 16, v244')
        e('v_and_b32 v248, v253, v244')
        e('v_lshlrev_b32 v249, 16, v251')
        e('v_and_b32 v250, v253, v251')
        e('v_mul_f32 v247, v247, v245'); e('v_mul_f32 v248, v248, v246')
        e('v_mul_f32 v249, v249, v245'); e('v_mul_f32 v250, v250, v246')
        e('v_cvt_pk_bf16_f32 v247, v247, v248')
        e('v_cvt_pk_bf16_f32 v249, v249, v250')
        e('v_dot2_f32_bf16 v241, v247, v240, v241')
        e('v_dot2_f32_bf16 v242, v249, v240, v242')
    b = []
    e = b.append
    for sh in (8, 4, 2, 1):
        for r in range(2): e(f'v_add_f32_dpp v{241+r}, v{241+r}, v{241+r} row_ror:{sh} row_mask:0xf bank_mask:0xf')
    for sw in ('v_permlane32_swap_b32', 'v_permlane16_swap_b32'):
        for r in range(2): e(f'v_mov_b32 v{243+r}, v{241+r}')
        for r in range(2): e(f'{sw} v{241+r}, v{243+r}')
        for r in range(2): e(f'v_add_f32 v{241+r}, v{241+r}, v{243+r}')
    e(f'v_and_b32 v243, 1, v{vL}')
    e('v_cmp_eq_u32 vcc, 1, v243')
    e(f'v_lshlrev_b32 v243, 2, v{vL}')
    e(f'v_and_b32 v245, 2, v{vL}')
    e('v_cndmask_b32 v241, v241, v242, vcc')
    e('v_cvt_pk_bf16_f32 v241, v241, v241')
    e('v_and_b32 v241, v253, v241')
    e(f'v_mul_f32 v241, 0x{LOG2E ^ 0x80000000:x}, v241')
    e('v_exp_f32 v241, v241')
    e(f'v_cmp_gt_u32 vcc, 32, v{vL}')
    e('v_add_f32 v241, 1.0, v241')
    e('v_rcp_f32 v241, v241')
    e('v_mov_b32 v244, 0x7fff0000')
    e('v_cvt_pk_bf16_f32 v241, v241, v241')
    e('v_and_b32 v241, v253, v241')
    e('v_sub_f32 v242, 1.0, v241')
    e('v_cndmask_b32 v243, v244, v243, vcc')
    e('v_cmp_eq_u32 vcc, 2, v245')
    e('v_cvt_pk_bf16_f32 v242, v242, v242')
    e('v_and_b32 v242, v253, v242')
    e('v_cndmask_b32 v241, v241, v242, vcc')
    return a, b

def p2_ids():
    return ['s_and_b32 s51, s2, 7', 's_lshr_b32 s52, s2, 3',
            's_and_b32 s94, s52, 1',
            's_lshr_b32 s92, s51, 1', 's_lshl_b32 s92, s92, 2', 's_bfe_u32 s53, s52, 0x20001', 's_add_u32 s92, s92, s53',
            's_and_b32 s93, s51, 1', 's_lshl_b32 s93, s93, 2', 's_lshr_b32 s53, s52, 3', 's_add_u32 s93, s93, s53']

def wd_calc(regs):
    o = [f'v_lshrrev_b32 v250, 4, v{vL}', f'v_and_b32 v251, 15, v{vL}', 'v_lshlrev_b32 v252, 1, v250',
         'v_xor_b32 v251, v252, v251', 'v_lshlrev_b32 v250, 11, v250', f'v_lshl_add_u32 v{regs[0]}, v251, 4, v250',
         'v_xor_b32 v251, 8, v251', 'v_lshl_add_u32 v251, v251, 4, v250', f'v_add_u32 v{regs[1]}, {8192-1024}, v251',
         f'v_add_u32 v{regs[2]}, {2*(8192-1024)}, v{regs[0]}', f'v_add_u32 v{regs[3]}, {3*(8192-1024)}, v251']
    return o

def gen_p1_path(P, cfg):
    o = []; e = o.append
    isq = P.isq
    T = P.typ
    SA, SB, ABASE = P.SA, P.SB, P.ABASE
    e(f'L1_{T}:')
    if not isq:
        e(f'v_lshrrev_b32 v0, 5, v{vL}')
        e(f'v_and_b32 v1, 31, v{vL}')
        e('s_and_b32 s51, s20, 1')
        e('s_lshl_b32 s51, s51, 3')
        e('v_lshlrev_b32 v2, 1, v0')
        e('v_or_b32 v2, s51, v2')
        e('v_xor_b32 v1, v1, v2')
        e('v_mul_u32_u24 v3, 7168, v0')
        e('v_mov_b32 v6, 0x7fff0000')
        for p in range(4):
            if p & 1: e('v_xor_b32 v4, 4, v1')
            else: e('v_mov_b32 v4, v1')
            e('v_cmp_gt_u32 vcc, 28, v4')
            e('v_lshlrev_b32 v4, 4, v4')
            e(f'v_add_u32 v4, {p*(2*7168-1024)}, v4')
            e('v_add_u32 v4, v4, v3')
            e(f'v_cndmask_b32 v{vDB[p]}, v6, v4, vcc')
    else:
        e('s_and_b32 s51, s20, 1')
        e('s_lshl_b32 s51, s51, 1')
        for p in range(3):
            e(f'v_add_u32 v0, {64*p}, v{vL}')
            e('v_mul_u32_u24 v1, 2731, v0')
            e('v_lshrrev_b32 v1, 16, v1')
            e('v_mul_u32_u24 v2, 24, v1')
            e('v_sub_u32 v2, v0, v2')
            e('v_lshrrev_b32 v3, 3, v2')
            e('v_and_b32 v2, 7, v2')
            e('v_lshlrev_b32 v4, 1, v1')
            e('v_and_b32 v4, 4, v4')
            e('v_or_b32 v4, s51, v4')
            e('v_xor_b32 v2, v2, v4')
            e('v_lshlrev_b32 v2, 4, v2')
            e('v_lshl_add_u32 v2, v3, 11, v2')
            e('v_mul_u32_u24 v1, 6144, v1')
            e('v_add_u32 v2, v2, v1')
            e(f'v_subrev_u32 v{vDB[p]}, {1024*p}, v2')
        e('s_and_b32 s52, s20, 1')
        e(f'v_lshrrev_b32 v0, 3, v{vL}')
        e('v_lshlrev_b32 v0, 12, v0')
        e(f'v_lshrrev_b32 v1, 4, v{vL}')
        e('s_lshl_b32 s53, s52, 2')
        e('v_or_b32 v1, s53, v1')
        e(f'v_and_b32 v2, 7, v{vL}')
        e('v_xor_b32 v1, v1, v2')
        e('v_lshl_add_u32 v0, v1, 4, v0')
        e('s_lshl_b32 s53, s52, 11')
        e(f'v_add_u32 v{vDH}, s53, v0')
        e('s_lshl_b32 s50, s52, 10')
        e('s_add_u32 s50, s50, 32768')
        e('s_lshl_b32 s49, s21, 8')
        e('s_max_u32 s49, s49, 16')
        e('s_sub_u32 s49, s49, 16')
        e('s_lshl_b32 s49, s49, 11')
    e(f's_mov_b32 s38, {ABASE}')
    e(f's_mul_i32 s43, s20, {SB//4}')
    e(f's_mul_i32 s41, s20, {8*P.wstride}')
    e(f's_mul_i32 s51, s22, {128 if isq else 448}')
    e('s_add_u32 s41, s41, s51')
    e(f's_add_u32 s42, s41, {1024*P.wstride}')
    e(f's_mul_i32 s51, s57, {32*P.wstride}')
    e('s_add_u32 s41, s41, s51')
    e(f's_mov_b32 s53, {SA}'); e(f's_mov_b32 s54, {-2*SA}')
    e(f's_mov_b32 s55, {SB}'); e(f's_mov_b32 s56, {-3*SB}')
    e('s_mov_b32 s45, s53'); e('s_mov_b32 s46, 0'); e('s_mov_b32 s47, s55'); e('s_mov_b32 s48, 0')
    e('s_waitcnt lgkmcnt(0)')
    o += srd(4, 24, 25, 2048 * 2048)
    o += srd(8, 26, 27, 1024 * 6144) if isq else srd(8, 28, 29, 1024 * 7168)
    o += P.dmaA(0)
    for v in range(-4, 0):
        o += P.dmaA((v + 5) & 1) + P.dmaB()
    o += srd(12, 32, 33, 0x10000000)
    o += srd(16, 30, 31, 2048)
    e('s_load_dwordx2 s[24:25], s[0:1], 16')
    e('s_load_dwordx2 s[26:27], s[0:1], 40')
    e('s_load_dwordx4 s[28:31], s[0:1], 56')
    e(f'v_and_b32 v0, 15, v{vL}')
    e(f'v_lshrrev_b32 v1, 4, v{vL}')
    e('v_lshrrev_b32 v2, 1, v0')
    e('v_xor_b32 v2, v2, v1')
    e('v_lshlrev_b32 v2, 4, v2')
    e('v_lshl_add_u32 v2, v0, 7, v2')
    e('s_lshr_b32 s51, s20, 1')
    e('s_lshl_b32 s52, s51, 14' if isq else 's_lshl_b32 s52, s20, 13')
    e(f's_add_u32 s52, s52, {ABASE}')
    e(f'v_add_u32 v{vA0}, s52, v2')
    e(f'v_xor_b32 v{vA1}, 64, v{vA0}')
    e(f'v_bfe_u32 v3, v{vL}, 2, 2')
    e(f'v_and_b32 v4, 3, v{vL}')
    e('v_lshlrev_b32 v4, 3, v4')
    e('v_lshl_add_u32 v5, v1, 3, v3')
    e('s_and_b32 s52, s20, 1')
    if not isq:
        e('v_lshl_add_u32 v4, v5, 9, v4')
        e('v_and_b32 v6, 1, v1')
        e('v_lshl_add_u32 v6, v6, 2, v3')
        for t in range(8):
            e(f'v_xor_b32 v7, {t}, v6')
            e(f'v_lshl_add_u32 v{vB[t]}, v7, 5, v4')
    else:
        e('v_mul_u32_u24 v5, 384, v5')
        e('v_add_u32 v4, v4, v5')
        e('v_and_b32 v6, 1, v1')
        e('v_and_b32 v7, 2, v3')
        e('v_or_b32 v6, v6, v7')
        e('s_lshl_b32 s58, s52, 1')
        for t in range(2):
            e(f's_add_u32 s59, s58, {t}')
            e('v_xor_b32 v7, s59, v6')
            e(f'v_lshl_add_u32 v{vB[t]}, v7, 5, v4')
        e('v_cmp_gt_u32 vcc, 8, v0')
        e('v_mov_b32 v7, 112')
        e('v_mov_b32 v8, 104')
        e('v_cndmask_b32 v7, v7, v8, vcc')
        e('s_cmp_eq_u32 s51, 0')
        e('s_cselect_b64 vcc, -1, 0')
        e('v_mov_b32 v8, 256')
        e('v_cndmask_b32 v7, v7, v8, vcc')
        e('v_add_u32 v7, v7, v0')
        e('v_bfe_u32 v8, v7, 1, 3')
        e('v_xor_b32 v8, v8, v1')
        e('v_lshlrev_b32 v8, 4, v8')
        e('v_lshl_add_u32 v8, v7, 7, v8')
        e(f'v_add_u32 v{vAh0}, {ABASE}, v8')
        e(f'v_xor_b32 v{vAh1}, 64, v{vAh0}')
        e('v_lshlrev_b32 v7, 2, v1')
        e('v_sub_u32 v7, v0, v7')
        e('s_or_b32 s58, s21, s51')
        for j in range(4):
            e(f'v_subrev_u32 v8, {j}, v7')
            e(f'v_cmp_gt_u32 s[{60+2*j}:{61+2*j}], 8, v8')
            e(f'v_cmp_gt_i32 s[{68+2*j}:{69+2*j}], -8, v8')
            e(f'v_cmp_gt_i32 s[{76+2*j}:{77+2*j}], 0, v8')
        e('s_nop 1')
        e('s_cmp_eq_u32 s58, 0')
        for j in range(4):
            e(f's_mov_b32 s{77+2*j}, 0')
            e(f's_cselect_b32 s{76+2*j}, 0, s{76+2*j}')
            e(f's_cselect_b64 s[{84+2*j}:{85+2*j}], 0, s[{68+2*j}:{69+2*j}]')
    if isq:
        e('v_mov_b32 v8, 0xffff0000')
        e('v_mov_b32 v9, 0xffff')
        for mi, mb in enumerate((60, 68, 76, 84)):
            for h in range(2):
                e(f'v_cndmask_b32 v10, 0, v9, s[{mb+4*h}:{mb+4*h+1}]')
                e(f'v_cndmask_b32 v11, 0, v8, s[{mb+4*h+2}:{mb+4*h+3}]')
                e('v_or_b32 v10, v10, v11')
                e(f'v_accvgpr_write_b32 a{170+2*mi+h}, v10')
    nacc = 208 if isq else 224
    for i in range(nacc): e(f'v_mov_b32 v{i}, 0')
    pre = P.nops(-3) + P.nops(-2) + P.nops(-1)
    e(f'v_lshlrev_b32 v253, 4, v{vL}')
    e(f's_waitcnt vmcnt({pre}) lgkmcnt(0)')
    e('s_barrier')
    stamp(e, cfg, 1)
    o += P.reads(0, 0)
    o += P.rd_adv(0, newdA=False)
    if isq:
        e('s_or_b32 s51, s2, s20')
        e('s_cmp_eq_u32 s51, 0')
        e('s_cbranch_scc0 L1_nononce')
        e('s_memrealtime s[58:59]')
        o += srd(96, 30, 31, 256)
        e('s_waitcnt lgkmcnt(0)')
        e('s_or_b32 s58, s58, 1')
        e('v_mov_b32 v240, s58'); e('v_mov_b32 v241, s59'); e('v_mov_b32 v242, 0')
        e('buffer_store_dwordx2 v[240:241], v242, s[96:99], 0 offen sc1')
        e('L1_nononce:')
    hd = ['s_lshl_b32 s51, s21, 5', 's_add_u32 s51, s51, s95', 's_lshl_b32 s51, s51, 2', 's_add_u32 s51, s51, s20',
          's_lshl_b32 s3, s51, 7', 's_lshl_b32 s51, s51, 12', f's_add_u32 s3, s3, 0x{WS_G:x}']
    hd += [f'buffer_load_dwordx4 a[{144+4*k}:{147+4*k}], v253, s[4:7], s51 offen offset:{k*1024}' for k in range(4)]
    hd += [f'buffer_load_dwordx4 a[{160+4*k}:{163+4*k}], v253, s[16:19], 0 offen offset:{k*1024}' for k in range(2)]
    nh = 6
    if cfg.npf:
        hd += [f's_getpc_b64 s[96:97]\nL1_pc_{T}:', f's_add_u32 s96, s96, {KNAME}-L1_pc_{T}', 's_addc_u32 s97, s97, -1',
               's_and_b32 s97, s97, 0xffff', f's_mov_b32 s98, code_end-{KNAME}', 's_mov_b32 s99, 0x20000',
               's_bfe_u32 s51, s2, 0x20003', 's_lshl_b32 s51, s51, 2', 's_add_u32 s51, s51, s20', f's_mul_i32 s51, s51, {cfg.npf*1024}']
        hd += [f'buffer_load_dwordx4 a[252:255], v253, s[96:99], s51 offen offset:{k*1024}' for k in range(cfg.npf)]
        nh += cfg.npf
    if cfg.tlb:
        hd += [f'v_lshlrev_b32 v240, 19, v{vL}', f'v_lshlrev_b32 v241, 16, v{vL}', 's_lshl_b32 s51, s20, 17']
        hd += ['buffer_load_dword a252, v240, s[12:15], s51 offen']
        hd += srd(96, 28, 29, 2048 * 2048) + ['buffer_load_dword a252, v241, s[96:99], 0 offen']
        nh += 2
    hd += ['s_lshl_b32 s51, s2, 2', 's_add_u32 s51, s51, s20', 's_mul_i32 s52, s51, 7168', 's_lshl_b32 s51, s51, 11',
           's_add_u32 s16, s26, s52', 's_addc_u32 s17, s27, 0', 's_and_b32 s17, s17, 0xffff', 's_mov_b32 s18, 7168',
           's_add_u32 s96, s24, s51', 's_addc_u32 s97, s25, 0', 's_and_b32 s97, s97, 0xffff', 's_mov_b32 s98, 2048', 's_mov_b32 s99, 0x20000',
           f's_mov_b32 s57, {-cfg.wpf0*1024}']
    o += P.iteration(0, P.nops(-2) + P.nops(-1), head=hd)
    o += P.iteration(1, P.nops(-1) + nh + P.nops(0))
    e('s_mov_b32 s34, 13')
    vm = P.nops(0) + P.nops(1)
    e('.p2align 6')
    e(f'L1_loop_{T}:')
    o += P.iteration(0, vm) + P.iteration(1, vm)
    o += ['s_sub_u32 s34, s34, 1', 's_cmp_lg_u32 s34, 0', f's_cbranch_scc1 L1_loop_{T}']
    ga, gb = gate_streams()
    gs = ga + gb
    c1 = 4 + 17 * 3; c2 = 4 + 17 * 7
    st28 = srd(4, 30, 31, 256) + [f'v_mov_b32 v{vDA1}, 0', f'buffer_load_dwordx2 a[168:169], v{vDA1}, s[4:7], 0 offen sc1'] + srd(8, 24, 25, 1024 * 2048)
    o += P.iteration(0, P.nops(26) + P.nops(27), dma=False, stream=st28, vstream=gs[:c1])
    o += P.iteration(1, P.nops(27) + 1, dma=False, vstream=gs[c1:c2])
    st30 = p2_ids() + ['s_lshl_b32 s96, s94, 20',
             's_lshl_b32 s97, s20, 16', 's_lshl_b32 s52, s93, 8', 's_add_u32 s97, s97, s52',
             's_add_u32 s96, s96, s97', 's_lshl_b32 s98, s20, 13']
    T4 = [234, 235, 236, 237]
    o += P.iteration(0, 1, dma=False, adv=False, stream=st30, vstream=gs[c2:] + ['buffer_store_dword v241, v243, s[12:15], s3 offen sc1'] + wd_calc(T4))
    st31 = []
    for n in range(4):
        st31 += [f's_add_u32 m0, s98, {n*32768}']
        st31 += [f'buffer_load_dwordx4 v{T4[p]}, s[8:11], s96 offen offset:{p*1024} lds' for p in range(4 if n < 3 else 2)]
        if n < 3:
            st31 += [f's_add_u32 m0, s98, {n*32768+4096}', 's_add_u32 s52, s96, 32768']
            st31 += [f'buffer_load_dwordx4 v{T4[p]}, s[8:11], s52 offen offset:{p*1024} lds' for p in range(4)]
            st31 += [f's_add_u32 s96, s96, {128*2048}']
    e('s_waitcnt lgkmcnt(0)')
    e('s_barrier')
    mm31 = P.mfmas(1, last=True)
    fill31 = []
    place(fill31, st31, 0, 2)
    pre = ['s_lshr_b32 s51, s20, 1', 's_and_b32 s59, s20, 1', 's_lshl_b32 s53, s21, 4',
           's_lshl_b32 s54, s51, 3' if isq else 's_lshl_b32 s54, s20, 2', 's_add_u32 s53, s53, s54', f's_mul_i32 s53, s53, {HROW}',
           f'v_lshlrev_b32 v253, 4, v{vL}']
    if not isq:
        pre += ['s_mul_i32 s54, s22, 7168', 's_add_u32 s53, s53, s54', 's_add_u32 s53, s53, 32768']
        pre += [f's_add_u32 s{34+k}, s53, {(k//2)*HROW + (k%2)*4096}' for k in range(8)]
        o += pre
        g = 0.0
        for t in range(4):
            g = max(g, 14 * t + 22)
            for pr in range(7):
                b = (14 * t + 2 * pr) * 4
                L = [f'v_cvt_pk_bf16_f32 v{b+k}, v{b+2*k}, v{b+2*k+1}' for k in range(4)]
                L += [f'v_pk_max_i16 v{b+k}, v{b+k}, 0' for k in range(4)]
                L += [f'buffer_store_dwordx4 v[{b}:{b+3}], v253, s[12:15], s{34+2*t+pr//4} offen offset:{(pr%4)*1024} sc1']
                for x in L:
                    fill31.append((int(g), x)); g += 1.0 / cfg.erate
        fill31.sort(key=lambda x: x[0])
        o += interleave(mm31, fill31)
        stamp(e, cfg, 2)
    else:
        pre += ['s_lshl_b32 s54, s22, 11', 's_add_u32 s53, s53, s54', 's_lshl_b32 s54, s59, 10', 's_add_u32 s53, s53, s54']
        pre += [f's_add_u32 s{34+t}, s53, {HROW*t}' for t in range(8)]
        pre += [f's_mov_b32 s42, 0x{SCALE:x}', f's_mov_b32 s43, 0x{SCALE:x}', f's_mov_b32 s44, 0x{LOG2E:x}', 's_mov_b32 s45, 0xffff0000',
                'v_mov_b32 v252, 0xff800000']
        pre += [f'v_accvgpr_read_b32 v{248+k}, a{170+k}' for k in range(4)]
        o += pre
        g = 0.0
        for t in range(9):
            g = max(g, 4 * t + 12)
            L = []
            if t < 8: L += [f'v_cvt_pk_bf16_f32 v{8*t+k}, v{8*t+2*k}, v{8*t+2*k+1}' for k in range(4)]
            b = 64 + 8 * t
            L += [f'v_cvt_pk_bf16_f32 v{b+k}, v{b+2*k}, v{b+2*k+1}' for k in range(4)]
            for x in L:
                fill31.append((int(g), x)); g += 0.5
        fill31.sort(key=lambda x: x[0])
        o += interleave(mm31, fill31)
        stamp(e, cfg, 2)
        for k in range(4): e(f'v_accvgpr_read_b32 v{132+k}, a{174+k}')
        def chain(dt, par): return 208 + (dt * 2 + par) * 10
        for i in range(5):
            for par in range(2):
                for dt in range(2):
                    c = chain(dt, par)
                    t = 8 if i == 0 else par + 2 * (i - 1)
                    b = 136 + 8 * t + 4 * dt
                    e(f'v_cvt_pk_bf16_f32 v{c+2*i}, v{b}, v{b+1}')
                    e(f'v_cvt_pk_bf16_f32 v{c+2*i+1}, v{b+2}, v{b+3}')
        tasks = []
        for t in range(8):
            L = []; a = L.append
            S = 136 + 8 * t; Z = S + 4; U = 8 * t + 4; M = 64 + 8 * t + 4
            kp = 64 + 8 * (t - 2 if t >= 2 else 8); kc = 64 + 8 * t; q = 8 * t
            a(f'v_mfma_f32_16x16x32_bf16 v[{S}:{S+3}], v[{kp}:{kp+3}], v[{q}:{q+3}], 0')
            a(f'v_mfma_f32_16x16x32_bf16 v[{Z}:{Z+3}], v[{kc}:{kc+3}], v[{q}:{q+3}], 0')
            mp = 76 if t == 0 else (84 if t == 1 else 68)
            vp = 132 if t == 0 else (134 if t == 1 else 250)
            for j in range(4): a(f'v_cndmask_b32 v{S+j}, v252, v{S+j}, s[{mp+2*j}:{mp+2*j+1}]')
            for j in range(4): a(f'v_cndmask_b32 v{Z+j}, v{S+j}, v{Z+j}, s[{60+2*j}:{61+2*j}]')
            def rnd():
                for k in range(2): a(f'v_cvt_pk_bf16_f32 v{U+k}, v{Z+2*k}, v{Z+2*k+1}')
                for k in range(2):
                    a(f'v_lshlrev_b32 v{Z+2*k}, 16, v{U+k}')
                    a(f'v_and_b32 v{Z+2*k+1}, s45, v{U+k}')
            if cfg.mimic: rnd()
            for k in range(2): a(f'v_pk_mul_f32 v[{Z+2*k}:{Z+2*k+1}], v[{Z+2*k}:{Z+2*k+1}], s[42:43]')
            if cfg.mimic: rnd()
            a(f'v_max3_f32 v{M}, v{Z}, v{Z+1}, v{Z+2}')
            a(f'v_max_f32 v{M}, v{M}, v{Z+3}')
            def xred(op):
                for sw in ('v_permlane32_swap_b32', 'v_permlane16_swap_b32'):
                    a(f'v_mov_b32 v{M+1}, v{M}')
                    a(f'{sw} v{M}, v{M+1}')
                    a(f'{op} v{M}, v{M}, v{M+1}')
            xred('v_max_f32')
            a(f'v_mul_f32 v{M}, s44, v{M}')
            for k in range(4): a(f'v_fma_f32 v{Z+k}, v{Z+k}, s44, -v{M}')
            for k in range(4): a(f'v_exp_f32 v{Z+k}, v{Z+k}')
            a(f'v_pk_add_f32 v[{U}:{U+1}], v[{Z}:{Z+1}], v[{Z+2}:{Z+3}]')
            a(f'v_add_f32 v{M}, v{U}, v{U+1}')
            xred('v_add_f32')
            a(f'v_rcp_f32 v{M}, v{M}')
            a(f'v_mov_b32 v{M+1}, v{M}')
            for k in range(2): a(f'v_pk_mul_f32 v[{Z+2*k}:{Z+2*k+1}], v[{Z+2*k}:{Z+2*k+1}], v[{M}:{M+1}]')
            for k in range(2): a(f'v_cvt_pk_bf16_f32 v{U+k}, v{Z+2*k}, v{Z+2*k+1}')
            for k in range(2): a(f'v_and_b32 v{S+k}, v{vp+k}, v{U+k}')
            for k in range(2): a(f'v_and_b32 v{S+2+k}, v{248+k}, v{U+k}')
            for dt, O in ((0, U), (1, M)):
                c = chain(dt, t & 1) + 2 * (t >> 1)
                a(f'v_mfma_f32_16x16x32_bf16 v[{O}:{O+3}], v[{c}:{c+3}], v[{S}:{S+3}], 0')
            a(f'v_cvt_pk_bf16_f32 v{q}, v{U}, v{U+1}')
            a(f'v_cvt_pk_bf16_f32 v{q+1}, v{U+2}, v{U+3}')
            a(f'v_cvt_pk_bf16_f32 v{q+2}, v{M}, v{M+1}')
            a(f'v_cvt_pk_bf16_f32 v{q+3}, v{M+2}, v{M+3}')
            a(f'buffer_store_dwordx4 v[{q}:{q+3}], v253, s[12:15], s{34+t} offen sc1')
            tasks.append(L)
        o += rr_merge(tasks)
    if not isq: e('s_branch L2_start')
    return o

def gen_p1(cfg):
    o = []; e = o.append
    e(f'.globl {KNAME}\n.p2align 8\n.type {KNAME},@function\n{KNAME}:')
    e('s_cmp_ge_u32 s2, 256')
    e('s_cbranch_scc1 L_exit')
    e('s_load_dwordx4 s[24:27], s[0:1], 0')
    e('s_load_dwordx2 s[28:29], s[0:1], 32')
    e('s_load_dwordx2 s[30:31], s[0:1], 48')
    e('s_load_dwordx2 s[32:33], s[0:1], 72')
    e('v_lshrrev_b32 v253, 6, v0')
    e(f'v_and_b32 v{vL}, 63, v0')
    e('v_readfirstlane_b32 s20, v253')
    stamp(e, cfg, 0)
    e('s_and_b32 s51, s2, 7'); e('s_lshr_b32 s52, s2, 3')
    e('s_and_b32 s21, s51, 1'); e('s_lshl_b32 s21, s21, 2'); e('s_and_b32 s53, s52, 3'); e('s_add_u32 s21, s21, s53')
    e('s_lshr_b32 s53, s52, 2')
    e('s_lshr_b32 s22, s51, 1'); e('s_lshl_b32 s22, s22, 2'); e('s_lshr_b32 s54, s53, 1'); e('s_add_u32 s22, s22, s54')
    e('s_and_b32 s23, s53, 1')
    e('s_lshl_b32 s95, s22, 1'); e('s_add_u32 s95, s95, s23')
    if cfg.rot1 == 'none': e('s_mov_b32 s57, 0')
    elif cfg.rot1 == 'xcd': e('s_lshl_b32 s57, s51, 2')
    elif cfg.rot1 == 'all':
        e('s_and_b32 s57, s52, 3'); e('s_lshl_b32 s57, s57, 1'); e('s_add_u32 s57, s57, s53')
        e('s_lshl_b32 s58, s51, 1'); e('s_add_u32 s57, s57, s58'); e('s_lshl_b32 s57, s57, 1'); e('s_and_b32 s57, s57, 31')
    e(f'v_lshrrev_b32 v0, 3, v{vL}')
    e('v_lshlrev_b32 v0, 12, v0')
    e(f'v_lshrrev_b32 v1, 4, v{vL}')
    e(f'v_and_b32 v2, 7, v{vL}')
    e('v_xor_b32 v1, v1, v2')
    e(f'v_lshl_add_u32 v{vDA0}, v1, 4, v0')
    e('v_xor_b32 v1, 4, v1')
    e('v_lshl_add_u32 v1, v1, 4, v0')
    e(f'v_add_u32 v{vDA1}, {32768-1024}, v1')
    e('s_lshl_b32 s35, s57, 6')
    e('s_lshl_b32 s36, s21, 19')
    e('s_lshl_b32 s58, s20, 16')
    e('s_add_u32 s36, s36, s58')
    e(f's_add_u32 s37, s36, {4*32*2048}')
    e('s_lshl_b32 s39, s20, 12')
    e('s_add_u32 s40, s39, 16384')
    e('s_cmp_eq_u32 s23, 0')
    e('s_cbranch_scc1 L1_Q')
    o += gen_p1_path(P1('W', cfg), cfg)
    o += gen_p1_path(P1('Q', cfg), cfg)
    return o

def gen_p2(cfg):
    o = []; e = o.append
    wB = [list(range(192, 200)), list(range(200, 208))]
    wD = [208, 209, 210, 211]
    wL16 = 212
    SLOT = 32768
    NQ = cfg.NQ; NP = 36 - NQ
    e('L2_start:')
    stamp(e, cfg, 3)
    e(f'v_and_b32 v218, 31, v{vL}')
    e('v_lshlrev_b32 v218, 2, v218')
    e('s_lshr_b32 s61, s92, 1'); e('s_lshl_b32 s61, s61, 8'); e(f's_add_u32 s61, s61, 0x{WS_FLAG:x}')
    e('s_add_u32 s65, s61, 128')
    o += wd_calc(wD)
    e(f'v_lshlrev_b32 v{wL16}, 4, v{vL}')
    e('s_cmp_eq_u32 s94, 0')
    e(f's_cselect_b32 s34, {NQ}, {NP}')
    e(f's_cselect_b32 s50, -5, {NP-3}')
    e(f's_mov_b32 s70, {144*1024}')
    e(f's_cselect_b32 s70, {(32+4*(NQ-4))*1024}, s70')
    e(f's_mov_b32 s41, {(32+4*(NQ-4))*1024}')
    e('s_cselect_b32 s41, 32768, s41')
    e(f's_mov_b32 s36, {3584*2048}')
    e(f's_cselect_b32 s36, {(NQ-4)*128*2048}, s36')
    e(f's_cselect_b32 s37, 0, {(NQ-4)*128*2048}')
    e('s_add_u32 s37, s37, s97')
    e('s_lshl_b32 s40, s94, 14')
    e('s_lshl_b32 s39, s92, 3'); e('s_lshl_b32 s51, s20, 1'); e('s_add_u32 s39, s39, s51')
    e(f's_mul_i32 s51, s39, {HROW}')
    e('s_add_u32 s68, s32, s51'); e('s_addc_u32 s69, s33, 0'); e('s_and_b32 s69, s69, 0xffff'); e('s_mov_b32 s71, 0x20000')
    e(f's_add_u32 s51, s51, {HROW}')
    e('s_add_u32 s72, s32, s51'); e('s_addc_u32 s73, s33, 0'); e('s_and_b32 s73, s73, 0xffff'); e('s_mov_b32 s74, s70'); e('s_mov_b32 s75, 0x20000')
    e('s_mov_b32 s38, s96')
    e('s_mov_b32 s46, 4')
    o += srd(16, 28, 29, 2048 * 2048)
    e(f'v_lshrrev_b32 v1, 4, v{vL}')
    e(f'v_bfe_u32 v3, v{vL}, 2, 2')
    e(f'v_and_b32 v4, 3, v{vL}')
    e('v_lshlrev_b32 v4, 3, v4')
    e('v_lshl_add_u32 v5, v1, 2, v3')
    e('v_lshl_add_u32 v4, v5, 8, v4')
    e('v_and_b32 v6, 7, v5')
    for ct in range(8):
        e(f'v_xor_b32 v7, {ct}, v6')
        e(f'v_lshl_add_u32 v{wB[0][ct]}, v7, 5, v4')
        e(f'v_add_u32 v{wB[1][ct]}, 0x10000, v{wB[0][ct]}')
    e(f'v_and_b32 v217, 15, v{vL}')
    e('v_lshlrev_b32 v217, 7, v217')
    e('v_mov_b32 v220, 0')
    e('v_and_b32 v232, 4, v218')
    e('s_lshl_b32 s60, s21, 1'); e('s_add_u32 s60, s60, s23'); e('s_lshl_b32 s60, s60, 4'); e('s_add_u32 s60, s60, s22')
    e('s_lshl_b32 s60, s60, 3'); e(f's_add_u32 s60, s60, 0x{WS_FLAG:x}')
    e('s_lshl_b32 s51, s92, 3'); e('s_add_u32 s51, s51, s93')
    e('s_lshl_b32 s62, s51, 7'); e(f's_add_u32 s62, s62, 0x{WS_FLAG+4096:x}')
    e('s_lshl_b32 s63, s51, 16'); e('s_lshl_b32 s53, s20, 14'); e('s_add_u32 s63, s63, s53')
    e(f's_add_u32 s63, s63, 0x{WS_PART:x}')
    e('s_lshl_b32 s64, s39, 10')
    e(f's_add_u32 s64, s64, 0x{WS_G:x}')
    e('s_mov_b32 s66, 0')
    e('s_mov_b32 s67, 0')
    for i in range(64): e(f'v_mov_b32 v{i}, 0')
    e('s_waitcnt vmcnt(0)')
    e('v_accvgpr_read_b32 v230, a168')
    e('v_accvgpr_read_b32 v231, a169')
    e('L2_nonce:')
    e('v_readfirstlane_b32 s76, v230')
    e('s_add_u32 s67, s67, 1')
    e('s_cmp_lg_u32 s76, 0')
    e('s_cbranch_scc1 L2_nonce_ok')
    e(f's_cmp_gt_u32 s67, 0x{SPIN:x}')
    e('s_cbranch_scc1 L2_nonce_ok')
    e('s_sleep 2')
    e('buffer_load_dwordx2 v[230:231], v220, s[4:7], 0 offen sc1')
    e('s_waitcnt vmcnt(0)')
    e('s_branch L2_nonce')
    e('L2_nonce_ok:')
    e(f'v_and_b32 v219, 1, v{vL}')
    e('v_cmp_eq_u32 vcc, 1, v219')
    e('s_barrier')
    e('v_cndmask_b32 v219, v230, v231, vcc')
    e('s_cmp_eq_u32 s20, 0')
    e('s_cbranch_scc0 L2_chk_ok')
    e('buffer_store_dwordx2 v[230:231], v220, s[12:15], s60 offen sc1')
    e('buffer_load_dword v221, v218, s[12:15], s61 offen sc1')
    stamp(e, cfg, 4)
    e('s_waitcnt vmcnt(0)')
    def poll(name, so, voff='v218'):
        e(f'{name}:')
        e(f'v_cmp_ne_u32 vcc, v219, v221')
        e('s_add_u32 s67, s67, 1')
        e(f's_cbranch_vccz {name}_ok')
        e(f's_cmp_gt_u32 s67, 0x{SPIN:x}')
        e(f's_cbranch_scc1 {name}_ok')
        e(f's_sleep {cfg.slp}')
        e(f'buffer_load_dword v221, {voff}, s[12:15], {so} offen sc1')
        e('s_waitcnt vmcnt(0)')
        e(f's_branch {name}')
        e(f'{name}_ok:')
    poll('L2_chk', 's61')
    e('s_barrier')
    stamp(e, cfg, 5)

    def areg(slot, q, tb): b = 64 + ((slot * 4 + q) * 2 + tb) * 4; return f'a[{b}:{b+3}]'
    def aload(n, q):
        return [f'buffer_load_dwordx4 {areg(n%4,q,tb)}, v{wL16}, s[{68+4*tb}:{71+4*tb}], s40 offen offset:{q*1024} {cfg.asc}' for tb in range(2)]
    def bdma(n, pp):
        so = 's38' if pp < 2 else 's59'
        pre = []
        if pp == 0: pre = [f's_add_u32 m0, s98, {(n%4)*SLOT}']
        if pp == 2: pre = [f's_add_u32 m0, s98, {(n%4)*SLOT+4096}']
        return pre + [f'buffer_load_dwordx4 v{wD[p%4]}, s[8:11], {so} offen offset:{(p%4)*1024} lds' for p in (2*pp, 2*pp+1)]
    def breads(s, n, q):
        sl = n % 4
        return [f'ds_read_b64_tr_b16 a[{s*32+ct*4+2*sec}:{s*32+ct*4+2*sec+1}], v{wB[sl>>1][ct]} offset:{(sl&1)*SLOT+q*8192+sec*4096}'
                for ct in range(8) for sec in range(2)]
    def phase_ops(n, q):
        b = ('B', n + 4, 0) if q == 3 else ('B', n + 3, q + 1)
        return [b] * 2 + [('A', n + 3, q)] * 2
    early = lambda x: x[0] == 'B' and (x[1] < 3 or (x[1] == 3 and x[2] == 0))
    def build(real):
        sq = []
        for n in range(-4, 12):
            for q in range(4):
                sq.append(('mark', n, q))
                if real and (n, q) == (0, 2): sq.append(('F', 0, 0))
                if real and (n, q) == (1, 0): sq.append(('G', 0, 0))
                for x in phase_ops(n, q):
                    if x[1] < 0 or (real and early(x)): continue
                    sq.append(x)
        return sq
    def cnt(sq, n, q, needs):
        i = sq.index(('mark', n, q))
        ops = [x for x in sq[:i] if x[0] != 'mark']
        idx = [k for k, x in enumerate(ops) if x in needs]
        if not idx: return 63
        return min(63, len(ops) - 1 - max(idx))
    R = build(True)
    def waits(n, q):
        needs = [('A', n, q)]
        if q == 3: needs += [('B', n + 1, pp) for pp in range(4)]
        if (n, q) == (1, 0): needs += [('F', 0, 0)]
        if (n, q) == (3, 0): needs += [('G', 0, 0)]
        return cnt(R, n, q, needs)
    for q in range(4):
        assert len({waits(n, q) for n in range(4, 12) if n < 11}) == 1, [waits(n, q) for n in range(4, 11)]
    for n in range(3):
        for q in range(4): o += aload(n, q)
        e('s_add_u32 s40, s40, 4096')
    o += breads(0, 0, 0)
    RS = cfg.RS
    def body(n, hooks=None):
        hooks = hooks or {}
        out = []
        for q in range(4):
            s = q & 1
            mm = [f'v_mfma_f32_16x16x32_bf16 v[{(tb*8+ct)*4}:{(tb*8+ct)*4+3}], a[{s*32+ct*4}:{s*32+ct*4+3}], {areg(n%4,q,tb)}, v[{(tb*8+ct)*4}:{(tb*8+ct)*4+3}]'
                  for ct in range(8) for tb in range(2)]
            out.append(f's_waitcnt vmcnt({waits(n, q)}) lgkmcnt(0)')
            if q == 3: out.append('s_barrier')
            out += hooks.get(('pre', q), [])
            fill = []
            rd = breads(1 - s, n + (q == 3), (q + 1) & 3)
            for k, r in enumerate(rd): fill.append((k * RS // 16, r))
            st = []
            if q == 3:
                st += hooks.get('bswitch', [f's_add_u32 s38, s38, {128*2048}'])
                st += bdma(n + 4, 0)
            else:
                if q == 0: st += ['s_add_u32 s59, s38, 32768']
                st += bdma(n + 3, q + 1)
            st += aload(n + 3, q)
            if q == 3: st += hooks.get('aadv', ['s_add_u32 s40, s40, 4096'])
            vp = cfg.vpos
            li = 0; pend = []
            for x in st:
                if x.startswith('buffer'):
                    g = vp[li]; li += 1
                    for k, y in enumerate(pend): fill.append((max(0, g - len(pend) + k), y))
                    pend = []
                    fill.append((g, x))
                else: pend.append(x)
            for y in pend: fill.append((15, y))
            fill += hooks.get(('fill', q), [])
            fill.sort(key=lambda x: x[0])
            blk = interleave(mm, fill)
            if cfg.nomfma2: blk = [x for x in blk if not x.startswith('v_mfma')]
            if cfg.nord2: blk = [x for x in blk if not x.startswith('ds_read')]
            out += blk
        return out
    o += body(0, {('pre', 2): ['buffer_load_dword v221, v218, s[12:15], s65 offen sc1'],
                  'bswitch': ['s_mov_b32 s8, s26', 's_and_b32 s9, s27, 0xffff', 's_mov_b32 s10, s36', 's_mov_b32 s38, s37'],
                  'aadv': ['s_mov_b32 s40, s41']})
    sv = o; o = []; e = o.append
    poll('L2_chk2', 's65')
    e('buffer_load_dwordx4 v[224:227], v217, s[12:15], s64 offen sc1')
    pol = o; o = sv; e = o.append
    o += body(1, {('pre', 0): pol})
    o += body(2)
    rc = ['v_max_f32 v226, 0x2b800000, v226', 'v_max_f32 v227, 0x2b800000, v227', 'v_rcp_f32 v228, v226', 'v_rcp_f32 v229, v227',
          'v_mul_f32 v228, v228, v224', 'v_mul_f32 v229, v229, v225']
    o += body(3, {('fill', 0): [(12 + k // 2, x) for k, x in enumerate(rc)]})
    for i in range(64): e(f'v_mul_f32 v{i}, v{i}, v{228+i//32}')
    e('.p2align 6')
    e('L2_loop:')
    for u in range(4):
        o += body(4 + u)
        if cfg.early and u == (NP - 3) % 4:
            e('s_cmp_eq_u32 s46, s50')
            e('s_cbranch_scc0 L2_e1_ret')
            e('buffer_load_dword v221, v232, s[12:15], s62 offen sc1')
            e('L2_e1_ret:')
        if cfg.early and u == (NP - 2) % 4:
            e('s_sub_u32 s51, s46, 1')
            e('s_cmp_eq_u32 s51, s50')
            e('s_cbranch_scc1 L2_e2')
            e('L2_e2_ret:')
        e('s_add_u32 s46, s46, 1')
        e('s_cmp_ge_u32 s46, s34')
        if u < 3: e('s_cbranch_scc1 L2_done')
        else: e('s_cbranch_scc0 L2_loop')
    e('L2_done:')
    stamp(e, cfg, 6)
    e('s_cmp_eq_u32 s94, 0')
    e('s_cbranch_scc0 L2_P')
    e('s_nop 7')
    for i in range(16):
        tb = i // 8
        for k in range(4): e(f'v_mul_f32 v{4*i+k}, v{4*i+k}, v{226+tb}')
        if i % 4 == 0 and i: e('s_add_u32 s63, s63, 4096')
        e(f'buffer_store_dwordx4 v[{4*i}:{3+4*i}], v{wL16}, s[12:15], s63 offen offset:{(i%4)*1024} sc1')
    e('s_waitcnt vmcnt(0)')
    e('s_barrier')
    e('s_cmp_eq_u32 s20, 0')
    e('s_cbranch_scc0 L2_fin')
    e('buffer_store_dwordx2 v[230:231], v220, s[12:15], s62 offen sc1')
    e('s_branch L2_fin')
    def partloads():
        l = []
        for i in range(16):
            if i % 4 == 0 and i: l.append('s_add_u32 s63, s63, 4096')
            l.append(f'buffer_load_dwordx4 v[{64+4*i}:{67+4*i}], v{wL16}, s[12:15], s63 offen offset:{(i%4)*1024} sc1')
        return l
    if cfg.early:
        e('L2_e2:')
        e('s_waitcnt vmcnt(16)')
        e('v_cmp_ne_u32 vcc, v219, v221')
        e('s_nop 1')
        e('s_cbranch_vccnz L2_e2_ret')
        o += partloads()
        e('s_mov_b32 s66, 1')
        e('s_branch L2_e2_ret')
    e('L2_P:')
    e(f'v_and_b32 v222, 15, v{vL}')
    e('v_lshlrev_b32 v222, 12, v222')
    e(f'v_lshrrev_b32 v223, 4, v{vL}')
    e('v_lshl_add_u32 v222, v223, 3, v222')
    e('s_lshl_b32 s54, s92, 18'); e('s_lshl_b32 s55, s20, 16'); e('s_add_u32 s54, s54, s55')
    e('s_lshl_b32 s55, s93, 8'); e('s_add_u32 s54, s54, s55')
    e('s_cmp_eq_u32 s66, 1')
    e('s_cbranch_scc1 L2_have')
    e('buffer_load_dword v221, v232, s[12:15], s62 offen sc1')
    e('s_waitcnt vmcnt(0)')
    poll('L2_poll', 's62', 'v232')
    o += partloads()
    e('L2_have:')
    e('s_waitcnt vmcnt(0)')
    for i in range(16):
        tb = i // 8; ct = i % 8
        for k in range(4): e(f'v_fma_f32 v{64+4*i+k}, v{4*i+k}, v{226+tb}, v{64+4*i+k}')
        e(f'v_cvt_pk_bf16_f32 v{64+4*i}, v{64+4*i}, v{65+4*i}')
        e(f'v_cvt_pk_bf16_f32 v{65+4*i}, v{66+4*i}, v{67+4*i}')
        e(f'buffer_store_dwordx2 v[{64+4*i}:{65+4*i}], v222, s[16:19], s54 offen offset:{tb*2048+ct*32}')
    e('L2_fin:')
    if cfg.stamps:
        e('s_waitcnt vmcnt(0)')
        stamp(e, cfg, 7)
        e('s_lshl_b32 s51, s2, 2'); e('s_add_u32 s51, s51, s20'); e('s_lshl_b32 s51, s51, 5')
        e(f's_add_u32 s51, s51, 0x{WS_DBG:x}')
        e(f'v_lshlrev_b32 v253, 2, v{vL}')
        e('s_mov_b64 exec, 0xff')
        e('buffer_store_dword v255, v253, s[12:15], s51 offen')
    e('L_exit:')
    e('s_endpgm')
    return o

def kd(name, vgpr):
    return f'''.amdhsa_kernel {name}
  .amdhsa_next_free_vgpr {vgpr}
  .amdhsa_next_free_sgpr 102
  .amdhsa_accum_offset 256
  .amdhsa_group_segment_fixed_size 0
  .amdhsa_kernarg_size 80
  .amdhsa_user_sgpr_count 2
  .amdhsa_user_sgpr_kernarg_segment_ptr 1
  .amdhsa_system_sgpr_workgroup_id_x 1
.end_amdhsa_kernel'''

def gen(cfg):
    lines = []
    for blk in gen_p1(cfg) + gen_p2(cfg):
        lines += blk.split('\n')
    lines = need(lines)
    txt = HEADER
    txt += '; @launch grid=(256,1,1) block=(256,1,1) lds=163840\n'
    txt += '.amdgcn_target "amdgcn-amd-amdhsa--gfx950"\n.text\n'
    txt += '\n'.join(lines) + '\ncode_end:\n'
    txt += '.section .rodata,"a"\n.p2align 6\n' + kd(KNAME, 512) + '\n'
    return txt

if __name__ == '__main__':
    cfg = Cfg()
    for a in sys.argv[2:]:
        k, v = a.split('=')
        cur = getattr(cfg, k)
        setattr(cfg, k, int(v) if isinstance(cur, int) else v)
    open(sys.argv[1], 'w').write(gen(cfg))
```
